```python
import torch

def _softmax(x, axis=-1):
    return torch.softmax(x, dim=axis)
def _gelu(x):
    return torch.nn.functional.gelu(x, approximate="tanh")
def _silu(x):
    return torch.nn.functional.silu(x)
def _sigmoid(x):
    return torch.sigmoid(x)
def _layernorm(x, axis=-1, eps=1e-5):
    m = x.mean(dim=axis, keepdim=True)
    v = x.var(dim=axis, keepdim=True, unbiased=False)
    return (x - m) / torch.sqrt(v + eps)
def _scatter_add(tgt, idx, src, axis=0):
    return tgt.clone().index_add_(axis, idx, src)
def _segment_sum(src, seg, n):
    out = torch.zeros((n,) + src.shape[1:], dtype=src.dtype)
    return out.index_add_(0, seg, src)
def _pad(x, pw):
    flat = tuple(v for pair in reversed(pw) for v in pair)
    return torch.nn.functional.pad(x, flat)

kernel_name = 'recurrent_scan__ssm_conv_h3__swiglu_ffn__prompt'

def setup_inputs():

    _w = (lambda a: (lambda t: t.to(torch.bfloat16) if t.is_floating_point() else t)(torch.as_tensor(a)))
    def _A_setup():
        B, S, D = 1, 2048, 448
        ks = 4
        return {
            "q": _w((lambda *s: torch.randn(*s, dtype=torch.bfloat16) * 0.05)(B, S, D)),
            "k": _w((lambda *s: torch.randn(*s, dtype=torch.bfloat16) * 0.2)(B, S, D)),
            "v": _w((lambda *s: torch.randn(*s, dtype=torch.bfloat16) * 0.2)(B, S, D)),
            "shift_k": _w((lambda *s: torch.randn(*s, dtype=torch.bfloat16) * 0.2)(D, ks) * 0.5),
            "ssm_k": _w((lambda *s: torch.randn(*s, dtype=torch.bfloat16) * 0.2)(D, S) * (1.0 / S ** 0.5)),
            "ssm_D": _w((lambda *s: torch.randn(*s, dtype=torch.bfloat16) * 0.2)(D)),
        }
    _A_in = _A_setup()

    def _B_setup():
        B, S, D, F = 1, 2048, 448, 1792
        return {
            "x": _w((lambda *s: torch.randn(*s, dtype=torch.bfloat16) * 0.05)(B, S, D)),
            "w_gate": _w((lambda *s: torch.randn(*s, dtype=torch.bfloat16) * 0.1)(D, F)),
            "w_up": _w((lambda *s: torch.randn(*s, dtype=torch.bfloat16) * 0.1)(D, F)),
            "w_down": _w((lambda *s: torch.randn(*s, dtype=torch.bfloat16) * 0.1)(F, D)),
        }
    _B_in = _B_setup()

    return {
        "A_q": _A_in["q"],
        "A_k": _A_in["k"],
        "A_v": _A_in["v"],
        "A_shift_k": _A_in["shift_k"],
        "A_ssm_k": _A_in["ssm_k"],
        "A_ssm_D": _A_in["ssm_D"],
        "B_x": _B_in["x"],
        "B_w_gate": _B_in["w_gate"],
        "B_w_up": _B_in["w_up"],
        "B_w_down": _B_in["w_down"],
    }

def reference(A_q, A_k, A_v, A_shift_k, A_ssm_k, A_ssm_D, B_x, B_w_gate, B_w_up, B_w_down):
    def _A_ref(q, k, v, shift_k, ssm_k, ssm_D):
        B, S, D = q.shape
        ks = shift_k.shape[-1]
        k_pad = _pad(k, ((0, 0), (ks - 1, 0), (0, 0)))
        k_shift = torch.zeros_like(k)
        for t in range(ks):
            k_shift = k_shift + k_pad[:, t:t + S, :] * shift_k[:, ks - 1 - t][None, None, :]
        kv = k_shift * v
        L = 2 * S
        kv_pad = _pad(kv, ((0, 0), (0, S), (0, 0)))
        kf_pad = _pad(ssm_k, ((0, 0), (0, S)))
        kv_f = (lambda x, axes=(-2,-1): torch.fft.rfft2(x.float(), dim=axes))(kv_pad[:, None, :, :], axes=(1, 2))
        kf_f = (lambda x, axes=(-2,-1): torch.fft.rfft2(x.float(), dim=axes))(kf_pad[:, None, :], axes=(1, 2))
        kf_f = (lambda x, *d: x.permute(*d))(kf_f, 1, 2, 0)
        y_f = kv_f * kf_f[None, :, :, :]
        y = (lambda x, s, axes=(-2,-1): torch.fft.irfft2(x, s=s, dim=axes).to(torch.bfloat16))(y_f, (1, L), axes=(1, 2))[:, 0, :S, :]
        y = y + kv * ssm_D[None, None, :]
        return q * y

    def _B_ref(x, w_gate, w_up, w_down):
        g = _silu(x @ w_gate)
        u = x @ w_up
        return (g * u) @ w_down

    x = A_q
    xn = _layernorm(x, axis=-1)
    s = _A_ref(xn, A_k, A_v, A_shift_k, A_ssm_k, A_ssm_D)
    g = _silu(_B_ref(xn, B_w_gate, B_w_up, B_w_down))
    return x + s * g
```

```python
import re, subprocess, os

class I:
    __slots__ = ("t", "needs", "tag", "kind", "w", "r", "size")
    def __init__(self, t, needs=(), tag=None):
        self.t = t.strip(); self.needs = list(needs); self.tag = tag
        self.kind = kind_of(self.t); self.w, self.r = rw_sets(self.t, self.kind); self.size = None

def kind_of(t):
    op = t.split()[0]
    if op.endswith(":") or op.startswith(";") or op.startswith("."): return "meta"
    if op.startswith("v_mfma"): return "mfma"
    if op.startswith("ds_"): return "ds"
    if op.startswith(("buffer_", "global_")): return "vm"
    if op.startswith(("s_load", "s_memtime", "s_memrealtime")): return "smem"
    if op.startswith("v_"): return "valu"
    if op.startswith("s_"): return "salu"
    raise ValueError(t)

_reg = re.compile(r"\b([vas])(?:\[(\d+):(\d+)\]|(\d+))(?![\w])")
def regs_in(s):
    out = set()
    for m in _reg.finditer(s):
        k = m.group(1)
        if m.group(2) is not None:
            for i in range(int(m.group(2)), int(m.group(3)) + 1): out.add(k + str(i))
        else: out.add(k + m.group(4))
    for sp in ("vcc", "m0", "exec"):
        if re.search(r"\b" + sp + r"\b", s): out.add(sp)
    return out

TRANS = ("v_exp_", "v_log_", "v_rcp_", "v_rsq_", "v_sqrt_", "v_sin_", "v_cos_")
def rw_sets(t, kind):
    if kind == "meta": return set(), set()
    parts = t.split(None, 1); op = parts[0]
    ops = [o.strip() for o in parts[1].split(",")] if len(parts) > 1 else []
    R = [regs_in(o) for o in ops]
    allr = set().union(*R) if R else set()
    if kind == "mfma": return R[0], set().union(*R[1:])
    if kind == "ds":
        if op.startswith("ds_read"): return R[0], set().union(*R[1:])
        return set(), allr
    if kind == "vm":
        if "_load" in op:
            if re.search(r"\blds\b", t): return set(), allr | {"m0"}
            return R[0], set().union(*R[1:])
        return set(), allr
    if kind == "smem": return R[0], set().union(*R[1:]) if len(R) > 1 else set()
    if kind == "valu":
        if op.startswith("v_nop"): return set(), set()
        if "permlane" in op and "swap" in op: return allr, allr
        w = set(R[0]); r = set().union(*R[1:]) if len(R) > 1 else set()
        if op.startswith(("v_add_co", "v_addc_co", "v_sub_co")): w |= R[1]; r = set().union(*R[2:])
        if op.startswith(("v_fmac", "v_dot2c")): r |= R[0]
        return w, r
    if kind == "salu":
        if op.startswith(("s_cmp", "s_waitcnt", "s_barrier", "s_nop", "s_cbranch", "s_branch", "s_endpgm", "s_sleep", "s_setprio")):
            return set(), allr
        w = set(R[0]); r = set().union(*R[1:]) if len(R) > 1 else set()
        if "saveexec" in op: w.add("exec")
        return w, r

def mfma_passes(t):
    if "32x32x16" in t: return 8
    if "16x16x32" in t: return 4
    raise ValueError(t)

def srcC(t):
    return regs_in(t.split(",")[3])

def need_states(p, c):
    n = 0
    pop = p.t.split()[0]; cop = c.t.split()[0]
    vw = {x for x in p.w if x[0] in "va" and x not in ("vcc",)}
    sw = {x for x in p.w if x[0] == "s" or x == "vcc"}
    if p.kind == "valu":
        dot = pop.startswith("v_dot")
        if c.kind == "mfma" and vw & c.r: n = max(n, 3 if dot else 2)
        if c.kind == "valu":
            if pop.startswith(TRANS) and vw & c.r: n = max(n, 1)
            if ("permlane" in cop or "dpp" in c.t) and vw & c.r: n = max(n, 2)
            if cop.startswith(("v_readlane", "v_readfirstlane")) and vw & c.r: n = max(n, 1)
            if sw & c.r: n = max(n, 2)
            if ("sdwa" in pop or "op_sel" in p.t) and vw & (c.r | c.w): n = max(n, 1)
        if dot and vw & (c.r | c.w):
            same = (cop == pop)
            if same:
                ops = [o.strip() for o in c.t.split(None, 1)[1].split(",")]
                ab = regs_in(ops[1]) | regs_in(ops[2])
                if vw & ab: n = max(n, 3)
            else: n = max(n, 3)
        if c.kind == "vm" and sw & c.r: n = max(n, 5)
        if c.kind == "salu" and sw & c.r: n = max(n, 1)
        if "exec" in p.w: n = max(n, 5) if c.kind in ("valu", "mfma") else n
    if p.kind == "salu":
        if "m0" in p.w and c.kind == "vm" and "m0" in c.r: n = max(n, 1)
    if p.kind == "mfma":
        ps = mfma_passes(p.t); big = {8: 12, 4: 8}[ps]
        if c.kind == "mfma":
            cc = srcC(c.t); ab = c.r - cc if not (cc & regs_in(",".join(c.t.split(",")[1:3]))) else c.r
            if p.w & regs_in(",".join(c.t.split(",")[1:3])): n = max(n, big)
            if p.w & cc:
                if cc == p.w and mfma_passes(c.t) == ps: pass
                else: n = max(n, {8: 10, 4: 6}[ps])
            elif p.w & c.w: n = max(n, big)
        elif c.kind in ("valu", "vm", "ds"):
            if p.w & (c.r | c.w): n = max(n, big)
            if c.kind == "valu" and srcC(p.t) & c.w: n = max(n, {8: 7, 4: 3}[ps])
    if p.kind in ("vm", "ds") and ("store" in pop or "write" in pop) and ("x4" in pop or "x3" in pop or "b128" in pop):
        if c.kind in ("valu", "mfma") and (p.r & c.w): n = max(n, 2)
        elif c.kind in ("vm", "ds") and (p.r & c.w): n = max(n, 1)
    return n

class Prog:
    def __init__(self):
        self.out = []; self.vm = []; self.lg = []
        self.known = set(); self.smem_out = False
    def _wait(self, needs):
        vn = None; ln = None
        for tg in needs:
            if tg not in self.known: raise KeyError("unknown tag " + str(tg))
            if tg in self.vm:
                last = len(self.vm) - 1 - self.vm[::-1].index(tg)
                n = len(self.vm) - 1 - last; vn = n if vn is None else min(vn, n)
            if tg in self.lg:
                last = len(self.lg) - 1 - self.lg[::-1].index(tg)
                n = len(self.lg) - 1 - last; ln = n if ln is None else min(ln, n)
        if ln is not None and self.smem_out: ln = 0
        if vn is None and ln is None: return
        s = "s_waitcnt"
        if vn is not None:
            vn = min(vn, 63); s += f" vmcnt({vn})"; self.vm = self.vm[len(self.vm) - vn:] if vn else []
        if ln is not None:
            ln = min(ln, 15); s += f" lgkmcnt({ln})"; self.lg = self.lg[len(self.lg) - ln:] if ln else []
            if ln == 0: self.smem_out = False
        self.out.append(I(s))
    def emit(self, ins):
        if isinstance(ins, str): ins = I(ins)
        if isinstance(ins, (list, tuple)):
            for x in ins: self.emit(x)
            return
        self._wait(ins.needs)
        if ins.t == "; wait": return
        self.out.append(ins)
        if ins.kind == "vm": self.vm.append(ins.tag); self.known.add(ins.tag)
        elif ins.kind == "ds": self.lg.append(ins.tag); self.known.add(ins.tag)
        elif ins.kind == "smem": self.lg.append(ins.tag); self.known.add(ins.tag); self.smem_out = True
    def __call__(self, t, needs=(), tag=None): self.emit(I(t, needs, tag))
    def wait(self, *needs): self._wait(needs)
    def wait_all(self, vm=True, lg=True):
        s = "s_waitcnt" + (" vmcnt(0)" if vm else "") + (" lgkmcnt(0)" if lg else "")
        self.out.append(I(s))
        if vm: self.vm = []
        if lg: self.lg = []; self.smem_out = False

def W(*needs): return I("; wait", needs)

def states_of(i):
    if i.kind == "meta": return 0
    if i.t.startswith("s_nop"): return int(i.t.split()[1]) + 1
    return 1

def pad_hazards(ins):
    out = []; added = 0
    for c in ins:
        if c.kind != "meta":
            dist = 0; need = 0
            for p in reversed(out):
                if dist >= 12: break
                if p.kind != "meta":
                    n = need_states(p, c)
                    if n - dist > need: need = n - dist
                dist += states_of(p)
            if need > 0:
                out.append(I(f"s_nop {need-1}")); added += need
        out.append(c)
    return out, added

def sizes(ins):
    txt = ".amdgcn_target \"amdgcn-amd-amdhsa--gfx950\"\n.text\n"
    for k, i in enumerate(ins): txt += i.t + "\n"
    open("_sz.s", "w").write(txt)
    r = subprocess.run(["llvm-mc", "-triple=amdgcn-amd-amdhsa", "-mcpu=gfx950", "-show-encoding", "_sz.s"], capture_output=True, text=True)
    if r.returncode: print(r.stderr[:3000]); raise SystemExit(1)
    enc = [l for l in r.stdout.splitlines() if "encoding:" in l]
    real = [i for i in ins if i.kind != "meta"]
    assert len(enc) == len(real), (len(enc), len(real))
    for i, l in zip(real, enc): i.size = l.split("encoding:")[1].count(",") + 1
    for i in ins:
        if i.kind == "meta": i.size = 0

NO_E64 = ("v_readfirstlane", "v_dot2c", "v_permlane", "v_nop", "v_accvgpr_mov", "v_fmaak", "v_fmamk")
def promotable(i):
    if i.kind != "valu" or i.size != 4: return False
    op = i.t.split()[0]
    return not op.startswith(NO_E64) and not op.endswith("_e32")

def align8(ins):
    sizes(ins)
    off = 0; last4 = None; mis = 0
    for k, i in enumerate(ins):
        if i.kind == "meta":
            if i.t.startswith(".p2align"): off = 0; last4 = None
            continue
        if i.size == 8 and off % 8 == 4:
            if last4 is not None:
                op, rest = last4.t.split(None, 1); last4.t = op + "_e64 " + rest; last4.size = 8; off += 4
            else: mis += 1
        if i.size == 8: last4 = last4 if off % 8 == 4 else None
        elif promotable(i): last4 = i
        off += i.size
    return off, mis
```

```python
import sys, os
sys.path.insert(0, os.path.dirname(os.path.abspath(__file__)))
from asmlib import *

NAME = "recurrent_scan__ssm_conv_h3__swiglu_ffn__prompt"
STAMP = "--stamp" in sys.argv
OUTP = [a for a in sys.argv[1:] if not a.startswith("--")]
OUTP = OUTP[0] if OUTP else f"cdna_kernels/{NAME}.s"

NWG = 224
WS_KVT = 0; WS_Y = 2 << 20; WS_H = 4 << 20; WS_STAMP = 12 << 20; WS_SIZE = 16 << 20
WR = 0; PS = 49152; HC = 98304; UB = 131584; ST = 140800; CS = 142336; YT = 143360; LDS_SIZE = 151552
KV = HC; TB = HC + 20480
assert CS % 1024 == 0
sW, sR_, sCB, sRR, sF = 3, 4, 5, 6, 7
sXO = 8
sT0, sT1, sT2 = 15, 42, 43
X, K, V, SH, SK, WG, WU, WD, OUT, DBG, WS = (f"s[{b}:{b+3}]" for b in range(44, 88, 4))
sWm0, sPm0, sONE, sD0, sD1, sD2, sD3 = 88, 89, 90, 91, 92, 93, 94
sHS = 96
sSPIN = 95; sDD = 100; sSTP = 101
vLane = 1
vWA = 16; vWg = 20; vWu = 22; vXd = 24; vXr = 28; vL16 = 32; vWdD = 33; vWdR = 35
vFlag = 37; vP1 = 38; vP2 = 39; vPoll = 40; vS = 41; vQ = 43; vC = 45; vC1 = 47; vC2 = 48
vCA = 49; vCB = 50; vCS = 51; vBX = 52
vF0 = 56
vF1 = 72
vXT = 96; vAX = 112; ACC = [128, 192]
def q(b, n=4, k="v"): return f"{k}[{b}:{b+n-1}]"
def wfrag(ks, j): return vF0 + 4 * (ks % 4) if j == 0 else vF1 + 12 * (ks % 2) + 4 * (j - 1)

P = Prog()
slow = []
nstamp = [0]
def stamp():
    if not STAMP: return []
    n = nstamp[0]; nstamp[0] += 1
    return [I(f"s_memtime s[16:17]", tag="stp"), I(f"v_mov_b32 v14, s16", needs=["stp"]),
            I(f"buffer_store_dword v14, v15, {WS}, s{sSTP} offen offset:{4*n}", tag="stpst")]

def srd(name, lo, size):
    b = int(name[2:name.index(":")])
    return [f"s_mov_b32 s{b}, s{lo}", f"s_and_b32 s{b+1}, s{lo+1}, 0xffff", f"s_mov_b32 s{b+2}, {size}", f"s_mov_b32 s{b+3}, 0x20000"]

def interleave(mf, fillers):
    for m, fl in zip(mf, fillers):
        P.emit(m); P.emit(fl)

def spread(slots, items, lo=0, hi=None):
    hi = len(slots) if hi is None else hi
    n = hi - lo
    for k, it in enumerate(items):
        s = lo + (k * n) // len(items)
        slots[s].extend(it if isinstance(it, list) else [it])

def poll_issue(voff, tag): return I(f"buffer_load_ubyte v{vPoll}, v{voff}, {DBG}, 0 offen sc1", tag=tag)
def poll_check(voff, stage, tag):
    n = len(slow)
    slow.append(f"""Lslow{n}:
    s_mov_b32 s{sSPIN}, 0
Lspin{n}:
    s_sleep 2
    buffer_load_ubyte v{vPoll}, v{voff}, {DBG}, 0 offen sc1
    s_add_u32 s{sSPIN}, s{sSPIN}, 1
    s_waitcnt vmcnt(0)
    v_cmp_gt_u32 vcc, {stage}, v{vPoll}
    s_cmp_gt_u32 s{sSPIN}, 0x40000
    s_cbranch_scc1 Lback{n}
    s_cbranch_vccnz Lspin{n}
    s_branch Lback{n}""")
    return [I(f"v_cmp_gt_u32 vcc, {stage}, v{vPoll}", needs=[tag]), I("s_nop 0"), I(f"s_cbranch_vccnz Lslow{n}"), I(f"Lback{n}:")]
def flag_store(stage):
    return [I(f"v_mov_b32 v2, {stage}"), I(f"buffer_store_byte v2, v{vFlag}, {DBG}, 0 offen sc1", tag=f"flag{stage}")]

P("s_cmp_ge_u32 s2, %d" % NWG); P("s_cbranch_scc1 Lend")
P("s_load_dwordx16 s[16:31], s[0:1], 0", tag="ka"); P("s_load_dwordx8 s[32:39], s[0:1], 64", tag="ka"); P("s_load_dwordx2 s[40:41], s[0:1], 96", tag="ka")
P("s_getpc_b64 s[42:43]")
P("v_min_u32 v2, NLINES, v0"); P("v_lshlrev_b32 v2, 7, v2"); P("v_mov_b32 v3, s43")
P("v_add_co_u32 v2, vcc, s42, v2"); P("v_addc_co_u32 v3, vcc, 0, v3, vcc")
P("global_load_dword v250, v[2:3], off", tag="pf")
P(f"v_and_b32 v{vLane}, 63, v0"); P("v_lshrrev_b32 v5, 6, v0"); P(f"v_readfirstlane_b32 s{sW}, v5")
P("s_and_b32 s8, s2, 7"); P("s_lshr_b32 s9, s2, 3")
P("s_mul_i32 s10, s9, 37"); P("s_lshr_b32 s10, s10, 8")
P("s_mul_i32 s11, s10, 7"); P(f"s_sub_u32 s{sCB}, s9, s11")
P("s_lshr_b32 s11, s8, 1"); P("s_and_b32 s12, s8, 1")
P(f"s_lshl_b32 s{sR_}, s11, 2"); P(f"s_add_u32 s{sR_}, s{sR_}, s10")
P(f"s_lshl_b32 s{sRR}, s{sR_}, 1"); P(f"s_add_u32 s{sRR}, s{sRR}, s12")
P(f"s_mul_i32 s{sF}, s12, 7"); P(f"s_add_u32 s{sF}, s{sF}, s{sCB}")
P("s_lshl_b32 s10, s10, 1"); P(f"s_add_u32 s10, s10, s{sCB}"); P("s_add_u32 s10, s10, s11")
P("s_mul_i32 s9, s10, 37"); P("s_lshr_b32 s9, s9, 8"); P("s_mul_i32 s9, s9, 7"); P("s_sub_u32 s10, s10, s9")
P("s_lshl_b32 s8, s10, 7")
for c in range(1, 7):
    P(f"s_add_u32 s{sXO+c}, s{sXO+c-1}, 128"); P(f"s_cmp_eq_u32 s{sXO+c}, 896"); P(f"s_cselect_b32 s{sXO+c}, 0, s{sXO+c}")
P(f"s_lshl_b32 s{sWm0}, s{sW}, 12"); P(f"s_mul_i32 s{sPm0}, s{sW}, 12288"); P(f"s_add_u32 s{sPm0}, s{sPm0}, {PS}")
P(f"s_mov_b32 s{sONE}, 0x3f803f80")
P(f"v_lshrrev_b32 v5, 3, v{vLane}"); P(f"v_and_b32 v6, 7, v{vLane}"); P(f"v_bfe_u32 v7, v{vLane}, 4, 1")
P(f"v_lshlrev_b32 v{vL16}, 4, v{vLane}")
P("v_lshlrev_b32 v8, 2, v7"); P("v_xor_b32 v8, v8, v6"); P("v_lshlrev_b32 v8, 4, v8")
P("v_mul_u32_u24 v9, 896, v5"); P("v_add_u32 v8, v8, v9")
P(f"s_lshl_b32 s{sT0}, s{sCB}, 7"); P(f"s_mul_i32 s{sT1}, s{sW}, {16*896}"); P(f"s_add_u32 s{sT0}, s{sT0}, s{sT1}")
P(f"v_add_u32 v{vWdD}, s{sT0}, v8"); P(f"v_add_u32 v{vWdD+1}, {8*896-1024}, v{vWdD}")
P(f"s_mul_i32 s{sT1}, s{sRR}, {64*896}")
P(f"v_add_u32 v10, s{sT1}, v{vWdD}")
P(f"v_add_u32 v11, {8*896-1024}, v10"); P(f"v_subrev_u32 v12, {8*896}, v10")
P.wait("ka")
P.emit(srd(K, 18, 1835008)); P.emit(srd(V, 20, 1835008))
P(f"s_mul_i32 s{sT2}, s{sW}, 5120"); P(f"s_add_u32 s{sT2}, s{sT2}, {KV}")
P(f"s_mov_b32 m0, s{sT2}"); P(f"buffer_load_dwordx4 v12, {K}, 0 offen lds", tag="kv")
P(f"s_add_u32 m0, s{sT2}, 1024"); P(f"buffer_load_dwordx4 v10, {K}, 0 offen lds", tag="kv"); P(f"buffer_load_dwordx4 v11, {K}, 0 offen offset:1024 lds", tag="kv")
P(f"s_add_u32 m0, s{sT2}, 3072"); P(f"buffer_load_dwordx4 v10, {V}, 0 offen lds", tag="kv"); P(f"buffer_load_dwordx4 v11, {V}, 0 offen offset:1024 lds", tag="kv")
P.emit(srd(SH, 22, 3584))
P(f"s_lshl_b32 s{sT0}, s{sCB}, 9"); P(f"v_lshlrev_b32 v9, 3, v{vLane}")
P(f"buffer_load_dwordx2 v[128:129], v9, {SH}, s{sT0} offen", tag="kv")
P.emit(srd(X, 16, 1835008)); P.emit(srd(WG, 30, 1605632)); P.emit(srd(WU, 32, 1605632))
P(f"s_lshl_b32 s{sT0}, s{sR_}, 2"); P(f"s_add_u32 s{sT0}, s{sT0}, s{sW}"); P(f"s_mul_i32 s{sT0}, s{sT0}, {32*896}")
P(f"v_lshrrev_b32 v9, 4, v{vLane}"); P("v_xor_b32 v9, v9, v6"); P("v_lshlrev_b32 v9, 4, v9")
P("v_mul_u32_u24 v13, 896, v5"); P(f"v_add_u32 v13, s{sT0}, v13")
P(f"v_add_u32 v{vXd}, v13, v9"); P("v_xor_b32 v9, 64, v9"); P("v_add_u32 v9, v13, v9")
P(f"v_add_u32 v{vXd+1}, {8*896-1024}, v9"); P(f"v_add_u32 v{vXd+2}, {16*896-2048}, v{vXd}"); P(f"v_add_u32 v{vXd+3}, {24*896-3072}, v9")
P(f"s_mul_i32 s{sT0}, s{sW}, {16*3584}"); P(f"s_lshl_b32 s{sT1}, s{sF}, 8"); P(f"s_add_u32 s{sT0}, s{sT0}, s{sT1}")
P("v_mul_u32_u24 v13, 3584, v5"); P(f"v_add_u32 v13, s{sT0}, v13")
P("v_lshlrev_b32 v9, 1, v7"); P("v_xor_b32 v9, v9, v6"); P("v_lshlrev_b32 v9, 4, v9")
P(f"v_add_u32 v{vWg}, v13, v9"); P("v_xor_b32 v9, 64, v9"); P(f"v_add_u32 v{vWu}, v13, v9")
P(f"v_add_u32 v{vWg+1}, {8*3584-1024}, v{vWg}"); P(f"v_add_u32 v{vWu+1}, {8*3584-1024}, v{vWu}")

def x_loads(c):
    s = c % 3
    return [[I(f"s_add_u32 m0, s{sPm0}, {4096*s}"), I(f"buffer_load_dwordx4 v{vXd}, {X}, s{sXO+c} offen lds", tag=("x", c))]] + \
           [I(f"buffer_load_dwordx4 v{vXd+i}, {X}, s{sXO+c} offen offset:{1024*i} lds", tag=("x", c)) for i in (1, 2, 3)]
def w_loads(c):
    s = c % 3; pre = []
    if c == 7: pre = [I(f"v_add_u32 v{r}, 128, v{r}") for r in (vWg, vWg+1, vWu, vWu+1)]
    return [pre + [I(f"s_mul_i32 s{sD0}, s{sXO+c%7}, 1792"), I(f"s_add_u32 m0, s{sWm0}, {WR+16384*s}"),
             I(f"buffer_load_dwordx4 v{vWg}, {WG}, s{sD0} offen lds", tag=("w", c))],
            I(f"buffer_load_dwordx4 v{vWg+1}, {WG}, s{sD0} offen offset:1024 lds", tag=("w", c)),
            [I(f"s_add_u32 m0, s{sWm0}, {WR+16384*s+2048}"), I(f"buffer_load_dwordx4 v{vWu}, {WU}, s{sD0} offen lds", tag=("w", c))],
            I(f"buffer_load_dwordx4 v{vWu+1}, {WU}, s{sD0} offen offset:1024 lds", tag=("w", c))]
P.emit(x_loads(0)); P.emit(w_loads(0)); P.emit(x_loads(1))
P.emit(srd(SK, 24, 1835008)); P.emit(srd(WD, 34, 1605632)); P.emit(srd(OUT, 36, 1835008)); P.emit(srd(DBG, 38, 256)); P.emit(srd(WS, 40, WS_SIZE))
P(f"s_lshl_b32 s{sT0}, s{sCB}, 5"); P(f"s_add_u32 s{sT0}, s{sT0}, s{sRR}")
P(f"s_lshl_b32 s{sT1}, s{sT0}, 2"); P(f"s_load_dword s{sDD}, s[26:27], s{sT1}", tag="dd")
P(f"v_mov_b32 v9, s{sT0}"); P("v_mov_b32 v13, 0x1000"); P("v_cmp_eq_u32 vcc, 0, v0"); P(f"v_cndmask_b32 v{vFlag}, v13, v9, vcc")
P(f"s_lshl_b32 s{sT1}, s{sCB}, 5"); P(f"v_and_b32 v9, 31, v{vLane}"); P(f"v_add_u32 v{vP1}, s{sT1}, v9")
P(f"v_min_u32 v9, 13, v{vLane}"); P("v_lshrrev_b32 v13, 1, v9"); P("v_lshlrev_b32 v13, 5, v13"); P("v_and_b32 v9, 1, v9")
P(f"s_lshl_b32 s{sT1}, s{sR_}, 1"); P(f"v_add3_u32 v{vP2}, v13, v9, s{sT1}")
if STAMP:
    P(f"s_lshl_b32 s{sSTP}, s2, 2"); P(f"s_add_u32 s{sSTP}, s{sSTP}, s{sW}"); P(f"s_lshl_b32 s{sSTP}, s{sSTP}, 8"); P(f"s_add_u32 s{sSTP}, s{sSTP}, {WS_STAMP}")
    P("v_mov_b32 v13, 0x40000000"); P(f"v_cmp_eq_u32 vcc, 0, v{vLane}"); P("v_cndmask_b32 v15, v13, 0, vcc")
    P("s_memrealtime s[16:17]", tag="stp"); P("v_mov_b32 v14, s16", needs=["stp"]); P(f"buffer_store_dword v14, v15, {WS}, s{sSTP} offen offset:248", tag="stpst")
P.emit(stamp())
P(f"v_and_b32 v2, 3, v{vLane}"); P(f"v_bfe_u32 v3, v{vLane}, 2, 2"); P(f"v_bfe_u32 v4, v{vLane}, 4, 1"); P(f"v_lshrrev_b32 v9, 5, v{vLane}")
P("v_lshlrev_b32 v10, 3, v2"); P("v_lshl_add_u32 v10, v3, 7, v10")
P("v_lshrrev_b32 v11, 1, v3")
P("v_lshl_add_u32 v12, v4, 11, v10"); P("v_lshl_add_u32 v12, v9, 10, v12")
P("v_lshl_add_u32 v13, v4, 1, v11"); P(f"v_xor_b32 v13, s{sW}, v13")
P(f"v_lshl_add_u32 v{vWA}, v13, 5, v12")
for j in (1, 2, 3): P(f"v_xor_b32 v{vWA+j}, {32*j}, v{vWA}")
P("v_lshl_add_u32 v12, v9, 9, v10"); P("v_lshl_add_u32 v13, v11, 1, v4"); P("v_lshl_add_u32 v12, v13, 5, v12")
P(f"v_add_u32 v{vWdR}, s{sPm0}, v12"); P(f"v_xor_b32 v{vWdR+1}, 64, v{vWdR}")
P(f"v_lshrrev_b32 v12, 4, v{vLane}"); P("v_lshlrev_b32 v13, 1, v11"); P("v_xor_b32 v13, v13, v12"); P("v_lshl_add_u32 v130, v13, 5, v10")
P(f"v_add_u32 v130, s{sT2}, v130")
P(f"s_lshr_b32 s{sT0}, s{sW}, 1"); P(f"s_and_b32 s{sT1}, s{sW}, 1"); P(f"s_lshl_b32 s{sT1}, s{sT1}, 8")
P(f"s_mul_i32 s{sD0}, s{sT0}, 16640"); P(f"s_add_u32 s{sD0}, s{sD0}, s{sT1}"); P(f"s_add_u32 s{sD0}, s{sD0}, {HC+56}")
P(f"s_mul_i32 s{sD1}, s{sT0}, 4608"); P(f"s_sub_u32 s{sD1}, s{sD1}, s{sT1}"); P(f"s_add_u32 s{sD1}, s{sD1}, {UB+288}")
P("v_mul_u32_u24 v13, 4160, v3"); P("v_lshl_add_u32 v13, v2, 3, v13"); P("v_lshlrev_b32 v12, 4, v12"); P("v_sub_u32 v13, v13, v12"); P(f"v_add_u32 v{vCA}, s{sD0}, v13")
P(f"v_and_b32 v13, 15, v{vLane}"); P("v_lshl_add_u32 v13, v13, 5, v12"); P(f"v_add_u32 v{vCB}, s{sD1}, v13")
P(f"v_and_b32 v12, 31, v{vLane}"); P(f"v_bfe_u32 v13, v{vLane}, 1, 3"); P("v_xor_b32 v13, v13, v9"); P("v_lshlrev_b32 v13, 4, v13")
P("v_lshl_add_u32 v13, v12, 7, v13"); P(f"v_add_u32 v{vXr}, s{sPm0}, v13")
for j in (1, 2, 3): P(f"v_xor_b32 v{vXr+j}, {32*j}, v{vXr}")
P(f"s_lshl_b32 s{sT0}, s{sW}, 8"); P(f"s_add_u32 s{sT0}, s{sT0}, {CS}"); P(f"v_lshl_add_u32 v{vCS}, v{vLane}, 2, s{sT0}")
P(f"s_lshl_b32 s{sT0}, s{sR_}, 2"); P(f"s_add_u32 s{sT0}, s{sT0}, s{sW}"); P(f"s_mul_i32 s{sT0}, s{sT0}, 114688")
P(f"s_lshl_b32 s{sT1}, s{sF}, 13"); P(f"s_add_u32 s{sT0}, s{sT0}, s{sT1}"); P(f"s_add_u32 s{sT0}, s{sT0}, {WS_H}")
for j in range(4):
    P(f"s_xor_b32 s{sT1}, s{sW}, {j}"); P(f"s_lshl_b32 s{sT1}, s{sT1}, 10"); P(f"s_add_u32 s{sHS+j}, s{sT0}, s{sT1}")
for r in list(range(vS, vS+6)) + list(range(vBX, vBX+4)) + list(range(vAX, vAX+16)): P(f"v_mov_b32 v{r}, 0")
P(f"v_mul_u32_u24 v13, 4608, v9"); P(f"v_lshl_add_u32 v13, v12, 4, v13"); P(f"v_add_u32 v13, {UB}, v13")
P(f"ds_write_b128 v13, {q(vAX)}", tag="z")
P.emit(w_loads(1))

KD = 132; VD = 142; KO = 150; TMP = 160
for b in range(5): P(f"ds_read_b64_tr_b16 {q(KD+2*b,2)}, v130 offset:{512*(b+1)}", needs=["kv"], tag="kd")
for b in range(4): P(f"ds_read_b64_tr_b16 {q(VD+2*b,2)}, v130 offset:{3072+512*b}", tag="vd")
P.emit(x_loads(2)); P.emit(w_loads(2))
Wa, Wb, Wc, Wd_, We = 2, 3, 4, 10, 11
P(f"v_alignbit_b32 v{Wa}, v129, v129, 16"); P(f"v_alignbit_b32 v{Wb}, v128, v128, 16")
P(f"v_and_b32 v{Wc}, 0xffff0000, v129"); P(f"v_and_b32 v{We}, 0xffff, v128")
P(f"v_and_b32 v12, 0xffff, v129"); P(f"v_and_b32 v13, 0xffff0000, v128"); P(f"v_or_b32 v{Wd_}, v12, v13")
P.wait("vd")
for d in range(8): P(f"v_dot2_f32_bf16 v{TMP+2*d}, v{KD+d}, v{Wc}, 0"); P(f"v_dot2_f32_bf16 v{TMP+2*d+1}, v{KD+d+1}, v{Wa}, 0")
for d in range(8): P(f"v_dot2_f32_bf16 v{TMP+2*d}, v{KD+d+1}, v{Wd_}, v{TMP+2*d}"); P(f"v_dot2_f32_bf16 v{TMP+2*d+1}, v{KD+d+2}, v{Wb}, v{TMP+2*d+1}")
for d in range(8): P(f"v_dot2_f32_bf16 v{TMP+2*d}, v{KD+d+2}, v{We}, v{TMP+2*d}")
for d in range(8): P(f"v_lshlrev_b32 v{TMP+16+2*d}, 16, v{VD+d}"); P(f"v_and_b32 v{TMP+17+2*d}, 0xffff0000, v{VD+d}")
for d in range(8): P(f"v_pk_mul_f32 {q(TMP+2*d,2)}, {q(TMP+2*d,2)}, {q(TMP+16+2*d,2)}")
for d in range(8): P(f"v_cvt_pk_bf16_f32 v{KD+d}, v{TMP+2*d}, v{TMP+2*d+1}")
P(f"s_lshl_b32 s{sT0}, s{sW}, 1"); P(f"v_xor_b32 v12, s{sT0}, v6"); P("v_lshlrev_b32 v12, 4, v12"); P(f"v_lshl_add_u32 v12, v{vLane}, 7, v12")
P(f"v_add_u32 v12, {TB}, v12"); P("v_xor_b32 v13, 16, v12")
P(f"ds_write_b128 v12, {q(KD)}", tag="tw"); P(f"ds_write_b128 v13, {q(KD+4)}", tag="tw")
P("v_xor_b32 v12, v5, v6"); P("v_lshlrev_b32 v12, 4, v12"); P("v_lshl_add_u32 v12, v5, 7, v12")
P(f"s_lshl_b32 s{sT0}, s{sW}, 11"); P(f"s_add_u32 s{sT0}, s{sT0}, {TB}"); P(f"v_add_u32 v12, s{sT0}, v12")
P("v_lshlrev_b32 v13, 4, v6"); P("v_lshl_add_u32 v13, v5, 12, v13")
P(f"s_lshl_b32 s{sT0}, s{sCB}, 2"); P(f"s_add_u32 s{sT0}, s{sT0}, s{sW}"); P(f"s_lshl_b32 s{sT0}, s{sT0}, 16")
P(f"s_lshl_b32 s{sT1}, s{sRR}, 7"); P(f"s_add_u32 s{sT0}, s{sT0}, s{sT1}"); P(f"s_add_u32 s{sT1}, s{sT0}, 32768")
P.wait("tw", ("w", 0), "dd"); P("s_barrier")
P.emit(stamp())

def w_reads(c, ks, js=(0, 1, 2, 3)):
    o = []
    for j in js:
        for h in (0, 1):
            o.append(I(f"ds_read_b64_tr_b16 {q(wfrag(ks, j)+2*h, 2)}, v{vWA+j} offset:{WR+16384*(c%3)+4096*ks+512*h}", tag=("wf", c, ks, j)))
    return o
def x_reads(c, ks):
    off = 4096 * (c % 3)
    return [I(f"ds_read_b128 {q(16*c+4*ks, 4, 'a')}, v{vXr+ks} offset:{off}", tag=("xf", c, ks)),
            I(f"ds_read_b128 {q(vXT+4*ks)}, v{vXr+ks} offset:{off}", tag=("xt", c, ks))]
def g1_mfma(c, ks, j):
    a = ACC[c // 7] + 16 * j; cc = c % 7
    src = "0" if (cc == 0 and ks == 0) else q(a, 16)
    needs = [("wf", c, ks, j | 1)] + ([("xf", c, ks)] if c < 7 else [])
    return I(f"v_mfma_f32_32x32x16_bf16 {q(a,16)}, {q(wfrag(ks,j))}, {q(16*cc+4*ks,4,'a')}, {src}", needs=needs)
def wd_where(u):
    if u in (8, 10, 12): return ("wr", {8: 11, 10: 12, 12: 13}[u] % 3)
    return ("ps", {0:1,1:2,2:0,3:1,4:2,5:0,6:1,7:2,9:0,11:1,13:2}[u])
def wd_loads(u):
    kind, s = wd_where(u); o = []
    for k in (0, 1):
        st = 2 * u + k; g, f2 = st // 14, st % 14
        m0 = f"s_add_u32 m0, s{sPm0}, {4096*s+2048*k}" if kind == "ps" else f"s_add_u32 m0, s{sWm0}, {WR+16384*s+2048*k}"
        o.append([I(f"s_mov_b32 s{sD1}, {(128*f2+64*g)*896}"), I(m0), I(f"buffer_load_dwordx4 v{vWdD}, {WD}, s{sD1} offen lds", tag=("wd", u))])
        o.append(I(f"buffer_load_dwordx4 v{vWdD+1}, {WD}, s{sD1} offen offset:1024 lds", tag=("wd", u)))
    return o
def wd_reg(st, mt): return (112 + 8 * st if st < 14 else 8 * (st - 14)) + 4 * mt
vWdR2 = vXd
def wd_reads(u):
    kind, s = wd_where(u); o = []
    for k in (0, 1):
        for mt in (0, 1):
            for h in (0, 1):
                ar, off = (vWdR, 4096 * s) if kind == "ps" else (vWdR2, 16384 * s)
                o.append(I(f"ds_read_b64_tr_b16 {q(wd_reg(2*u+k, mt)+2*h, 2, 'a')}, v{ar+mt} offset:{off+2048*k+1024*h}", needs=[("wd", u)], tag=("wdf", u)))
    return o
def silu_tile(g, j, packed, T):
    a = ACC[g] + 16 * j; o = []
    for p in range(4):
        g0, g1, u0, u1 = a+2*p, a+2*p+1, a+8+2*p, a+9+2*p
        t0, t1 = T + 4 + 2*(p % 2), T + 5 + 2*(p % 2)
        if packed:
            o += [I(f"v_mul_f32 v{t0}, v{vC1}, v{g0}"), I(f"v_mul_f32 v{t1}, v{vC1}, v{g1}"),
                  I(f"v_exp_f32 v{t0}, v{t0}"), I(f"v_exp_f32 v{t1}, v{t1}"),
                  I(f"v_pk_mul_f32 {q(u0,2)}, {q(g0,2)}, {q(u0,2)}"),
                  I(f"v_fma_f32 v{t0}, v{t0}, v{vC2}, v{vC2}"), I(f"v_fma_f32 v{t1}, v{t1}, v{vC2}, v{vC2}"),
                  I(f"v_rcp_f32 v{t0}, v{t0}"), I(f"v_rcp_f32 v{t1}, v{t1}"), I("s_nop 0"),
                  I(f"v_pk_mul_f32 {q(u0,2)}, {q(u0,2)}, {q(t0,2)}"),
                  I(f"v_cvt_pk_bf16_f32 v{T+p}, v{u0}, v{u1}")]
        else:
            o += [I(f"v_mul_f32 v{t0}, v{vC1}, v{g0}"), I(f"v_mul_f32 v{t1}, v{vC1}, v{g1}"),
                  I(f"v_exp_f32 v{t0}, v{t0}"), I(f"v_mul_f32 v{u0}, v{g0}, v{u0}"), I(f"v_exp_f32 v{t1}, v{t1}"),
                  I(f"v_fma_f32 v{t0}, v{t0}, v{vC2}, v{vC2}"), I(f"v_mul_f32 v{u1}, v{g1}, v{u1}"), I(f"v_rcp_f32 v{t0}, v{t0}"),
                  I(f"v_fma_f32 v{t1}, v{t1}, v{vC2}, v{vC2}"), I(f"v_rcp_f32 v{t1}, v{t1}"),
                  I(f"v_mul_f32 v{u0}, v{u0}, v{t0}"), I(f"v_mul_f32 v{u1}, v{u1}, v{t1}"),
                  I(f"v_cvt_pk_bf16_f32 v{T+p}, v{u0}, v{u1}")]
    o.append(I(f"buffer_store_dwordx4 {q(T)}, v{vL16}, {WS}, s{sHS+j} offen sc1", tag=("hst", g)))
    return o
def bf16r(d, s):
    return [I(f"v_cvt_pk_bf16_f32 v{d}, v{s}, v{s}"), I(f"v_and_b32 v{d}, 0xffff0000, v{d}")]
def stats_final():
    o = [I(f"v_add_f32 v{vS}, v{vS}, v{vS+1}"), I(f"v_add_f32 v{vQ}, v{vQ}, v{vQ+1}"),
         I(f"v_mov_b32 v{vS+1}, v{vS}"), I(f"v_mov_b32 v{vQ+1}, v{vQ}"),
         I(f"v_permlane32_swap_b32 v{vS}, v{vS+1}"), I(f"v_permlane32_swap_b32 v{vQ}, v{vQ+1}"),
         I(f"v_add_f32 v{vS}, v{vS}, v{vS+1}"), I(f"v_add_f32 v{vQ}, v{vQ}, v{vQ+1}"),
         I(f"v_mul_f32 v{vS}, 0x3b124925, v{vS}"), I(f"v_mul_f32 v{vQ}, 0x3b124925, v{vQ}"),
         I(f"v_fma_f32 v{vQ}, -v{vS}, v{vS}, v{vQ}"), I(f"v_max_f32 v{vQ}, 0, v{vQ}"),
         I(f"v_cvt_pk_bf16_f32 v{vBX}, -v{vS}, -v{vS}")]
    o += bf16r(vQ, vQ) + [I(f"v_add_f32 v{vQ}, 0x3727c5ac, v{vQ}")] + bf16r(vQ, vQ) + [I(f"v_sqrt_f32 v{vQ}, v{vQ}")] + bf16r(vQ, vQ)
    o += [I(f"v_rcp_f32 v2, v{vQ}"), I(f"v_mul_f32 v{vC2}, v{vQ}, v{vQ}"), I(f"v_and_b32 v3, 0xffff0000, v{vBX}"),
          I(f"v_mul_f32 v{vC1}, 0xbfb8aa3b, v2"), I("v_mul_f32 v3, v3, v2"),
          I(f"v_and_b32 v4, 31, v{vLane}"), I(f"v_lshlrev_b32 v4, 3, v4"), I(f"s_lshl_b32 s{sT0}, s{sW}, 8"), I(f"s_add_u32 s{sT0}, s{sT0}, {ST}"),
          I(f"v_add_u32 v4, s{sT0}, v4"), I("ds_write_b64 v4, v[2:3]", tag="stw")]
    return o
def cs_final():
    return [I(f"v_add_f32 v{vC}, v{vC}, v{vC+1}")] + bf16r(vC+1, vC) + [I(f"v_sub_f32 v{vC+1}, v{vC}, v{vC+1}"),
            I(f"v_cvt_pk_bf16_f32 v4, v{vC}, v{vC+1}"), I(f"ds_write_b32 v{vCS}, v4", tag="csw"),
            I(f"v_mov_b32 v{vC}, 0"), I(f"v_mov_b32 v{vC+1}, 0")]
def cs_reads(g):
    o = []
    for j in range(4):
        if j == 0: o.append(I(f"ds_read_b32 v{vAX}, v{vCS}", tag=("csr", g)))
        else: o.append([I(f"v_xor_b32 v4, {256*j}, v{vCS}"), I(f"ds_read_b32 v{vAX+4*j}, v4", tag=("csr", g))])
    return o
def ext_mfma(g, j):
    a = ACC[g] + 16 * j
    return I(f"v_mfma_f32_32x32x16_bf16 {q(a,16)}, {q(vAX+4*j)}, {q(vBX)}, {q(a,16)}", needs=[("csr", g)])

HR = [2, 8]
def h_loads():
    o = [[I(f"s_lshl_b32 s{sT0}, s{sCB}, 5"), I(f"s_add_u32 s{sT0}, s{sT0}, s{sRR}"), I(f"s_lshl_b32 s{sT0}, s{sT0}, 13"),
          I(f"s_lshl_b32 s{sT1}, s{sW}, 11"), I(f"s_add_u32 s{sT0}, s{sT0}, s{sT1}"),
          I(f"buffer_load_dwordx4 v[4:7], v{vL16}, {SK}, s{sT0} offen", tag="hr")],
         I(f"buffer_load_dwordx4 v[10:13], v{vL16}, {SK}, s{sT0} offen offset:1024", tag="hr"),
         I(f"buffer_load_dwordx2 v[8:9], v{vL16}, {SK}, s{sT0} offen offset:1016", tag="hr"),
         [I(f"s_and_b32 s{sT1}, s{sT1}, 2048"), I(f"s_sub_u32 s{sT0}, s{sT0}, s{sT1}"), I(f"s_sub_u32 s{sT1}, s{sT1}, 8"),
          I(f"v_add_u32 v3, s{sT1}, v{vL16}"), I(f"buffer_load_dwordx2 v[2:3], v3, {SK}, s{sT0} offen", tag="hr")]]
    return o
def h_build(T):
    o = [[I(f"s_lshr_b32 s{sT0}, s{sW}, 1"), I(f"s_mul_i32 s{sT0}, s{sT0}, 16640"), I(f"s_and_b32 s{sT1}, s{sW}, 1"), I(f"s_lshl_b32 s{sT1}, s{sT1}, 11")],
         [I(f"s_add_u32 s{sT0}, s{sT0}, s{sT1}"), I(f"s_add_u32 s{sT0}, s{sT0}, {HC+32}"), I(f"v_add_u32 v{T}, s{sT0}, v{vL16}")]]
    for un in (0, 1):
        R = HR[un]; off = 1024 * un
        o.append(I(f"ds_write_b128 v{T}, {q(R+2)} offset:{off}", needs=["hr"], tag="hw"))
        o += [I(f"v_alignbit_b32 v{T+2+d}, v{R+2+d}, v{R+1+d}, 16") for d in range(4)]
        o.append(I(f"ds_write_b128 v{T}, {q(T+2)} offset:{off+4160}", tag="hw"))
        o += [I(f"v_mov_b32 v{T+6+d}, v{R+1+d}") for d in range(4)]
        o.append(I(f"ds_write_b128 v{T}, {q(T+6)} offset:{off+8320}", tag="hw"))
        o += [I(f"v_alignbit_b32 v{T+2+d}, v{R+1+d}, v{R+d}, 16") for d in range(4)]
        o.append(I(f"ds_write_b128 v{T}, {q(T+2)} offset:{off+12480}", tag="hw"))
    o += [[I(f"v_lshrrev_b32 v{T}, 3, v{vLane}"), I(f"v_mul_u32_u24 v{T}, 4160, v{T}"), I(f"v_and_b32 v{T+1}, 7, v{vLane}")],
          [I(f"v_lshl_add_u32 v{T}, v{T+1}, 2, v{T}"), I(f"v_add_u32 v{T}, {HC}, v{T}"), I(f"ds_write_b32 v{T}, v{vBX+1}", tag="hw")]]
    return o
def u_loads():
    return [[I(f"s_lshl_b32 s{sT0}, s{sCB}, 5"), I(f"s_add_u32 s{sT0}, s{sT0}, s{sRR}"), I(f"s_lshl_b32 s{sT0}, s{sT0}, 13"),
             I(f"s_lshl_b32 s{sT1}, s{sW}, 11"), I(f"s_add_u32 s{sT0}, s{sT0}, s{sT1}")],
            [I(f"s_lshr_b32 s{sT2}, s{sW}, 1"), I(f"s_lshl_b32 s{sT2}, s{sT2}, 9"), I(f"s_add_u32 s{sT1}, s{sT1}, s{sT2}"),
             I(f"s_add_u32 m0, s{sT1}, {UB+512}"), I(f"buffer_load_dwordx4 v{vL16}, {WS}, s{sT0} offen sc1 lds", tag="u")],
            I(f"buffer_load_dwordx4 v{vL16}, {WS}, s{sT0} offen offset:1024 sc1 lds", tag="u")]

P.emit(x_reads(0, 0)); P.emit(w_reads(0, 0))
P(f"ds_read_b128 {q(192)}, v12", tag="tr"); P(f"ds_read_b128 {q(196)}, v12 offset:1024", tag="tr")
pend = [I(f"buffer_store_dwordx4 {q(192)}, v13, {WS}, s{sT0} offen sc1", needs=["tr"], tag="kst"),
        I(f"buffer_store_dwordx4 {q(196)}, v13, {WS}, s{sT1} offen sc1", tag="kst")]
e0 = []
for j in range(4): e0 += silu_tile(0, j, False, vXT + 8 * (j % 2))
E0_CH = [7, 8, 9, 10, 11, 12]
for c in range(14):
    g = c // 7; last = (c % 7 == 6)
    slots = [[] for _ in range(12)]
    for ks in range(3):
        rd = (x_reads(c, ks+1) if c < 7 else []) + w_reads(c, ks+1)
        spread(slots, rd, 4*ks, 4*ks+4)
    spread(slots, pend, 0, 12) if pend else None
    pend = []
    if c >= 7: spread(slots, wd_reads(c-7), 1, 11)
    if c in E0_CH:
        k = E0_CH.index(c); n = len(e0)
        part = e0[k*n//len(E0_CH):(k+1)*n//len(E0_CH)]
        tail_part = part[len(part)*3//4:]; spread(slots, part[:len(part)*3//4], 2 if c == 7 else 0, 12)
    else: tail_part = []
    if c == 5: spread(slots, h_build(ACC[1]+16), 0, 12)
    interleave([g1_mfma(c, ks, j) for ks in range(3) for j in range(4)], slots)
    P.wait(("wf", c, 3, 3), *([("wdf", c-7)] if c >= 7 else []))
    if c < 7:
        for i in range(16):
            P(f"v_dot2c_f32_bf16 v{vS+i%2}, s{sONE}, v{vXT+i}"); P(f"v_dot2c_f32_bf16 v{vQ+i%2}, v{vXT+i}, v{vXT+i}")
    for i in range(16): P(f"v_dot2c_f32_bf16 v{vC+i%2}, s{sONE}, v{vF0+i}")
    if last: P.emit(cs_final())
    P.emit(g1_mfma(c, 3, 0))
    if c == 6: P.emit(stats_final())
    needs = []
    if c < 13: needs.append(("w", c+1))
    if last: needs.append("csw")
    if c == 2: needs.append("kst")
    if c == 6: needs += ["stw", "hw"]
    if c == 13: needs += [("hst", 0), "u"]
    P.wait(*needs); P("s_barrier")
    if c in (6, 13): P.emit(stamp())
    slots = [[] for _ in range(3)]
    nxt = []
    if last: nxt += cs_reads(g)
    if c < 13: nxt += (x_reads(c+1, 0) if c+1 < 7 else []) + w_reads(c+1, 0)
    P.emit(nxt[:3]); spread(slots, nxt[3:], 0, 3) if nxt[3:] else None
    if tail_part: spread(slots, tail_part, 0, 3)
    interleave([g1_mfma(c, 3, j) for j in (1, 2, 3)], slots)
    if c + 3 < 7: pend += x_loads(c+3)
    if c + 3 < 14: pend += w_loads(c+3)
    if 4 <= c <= 10: pend += wd_loads(c-4)
    if c == 11: pend += wd_loads(7) + wd_loads(8)
    if c == 12: pend += wd_loads(9) + wd_loads(10)
    if c == 13: pend += wd_loads(11) + wd_loads(12)
    if c == 2: pend = [flag_store(1)] + h_loads() + pend
    if c == 4:
        pend += [[I(f"s_sub_u32 s{sT0}, s{sWm0}, s{sPm0}"), I(f"v_add_u32 v{vWdR2}, s{sT0}, v{vWdR}"), I(f"v_add_u32 v{vWdR2+1}, s{sT0}, v{vWdR+1}")]]
    if c == 8: pend = [poll_issue(vP1, "p1")] + pend
    if c == 10: pend = [poll_check(vP1, 1, "p1")] + u_loads() + pend
    if c == 13: pend = [flag_store(2)] + pend
    if last:
        sl = [[] for _ in range(4)]
        if c == 13: spread(sl, pend[:5], 0, 4); pend = pend[5:]
        interleave([ext_mfma(g, j) for j in range(4)], sl)

CACC = 56; CBUF = [128, 192]
def conv_reads(rr):
    b = CBUF[rr % 2]; o = []
    for p in range(8):
        o.append(I(f"ds_read_b128 {q(b+32+4*p)}, v{vCB} offset:{512*p+64*(3-rr)}", tag=("cb", rr, p)))
        for h in (0, 1):
            o.append(I(f"ds_read_b64_tr_b16 {q(b+4*p+2*h,2)}, v{vCA} offset:{64*rr+512*p+8*(1-h)}", tag=("ca", rr, p)))
    return o
for j in range(4): P(f"s_add_u32 s{sHS+j}, s{sHS+j}, 4096")
e1 = []
for j in range(4): e1 += silu_tile(1, j, True, vXT + 8 * (j % 2))
slots = [[] for _ in e1]
n = len(e1)
spread(slots, pend, 0, n//8); pend = []
spread(slots, wd_reads(7) + wd_reads(8) + [W(("wdf", 7))] + wd_loads(13) + wd_reads(9) + wd_reads(10), n//8, n*5//8)
spread(slots, [poll_issue(vP2, "p2a")], n//2, n//2+1)
spread(slots, conv_reads(0), n*5//8, n-2)
interleave(e1, slots)
P.emit(stamp())

vHL = vXr
def hreg(i):
    i %= 32
    if i < 8: return q(224 + 4*i, 4, 'a')
    if i < 16: return q(vXT + 4*(i-8))
    return q(192 + 4*(i-16))
HORD = [(st, nt) for st in range(28) for nt in (0, 1)]
def h_load(i):
    st, nt = HORD[i]; g, f2 = st // 14, st % 14
    ld = I(f"buffer_load_dwordx4 {hreg(i)}, v{vHL+nt}, {WS}, s{sD0} offen sc1", tag=("h", i))
    return [I(f"s_mov_b32 s{sD0}, {8192*f2+4096*g}"), ld] if nt == 0 else ld
hl_setup = [I(f"s_mul_i32 s{sT0}, s{sRR}, {2*114688}"), I(f"s_lshl_b32 s{sT1}, s{sW}, 10"), I(f"s_add_u32 s{sT0}, s{sT0}, s{sT1}"),
            I(f"s_add_u32 s{sT0}, s{sT0}, {WS_H}"), I(f"v_add_u32 v{vHL}, s{sT0}, v{vL16}"), I(f"v_add_u32 v{vHL+1}, 114688, v{vHL}")]
for rr in range(4):
    b = CBUF[rr % 2]; mf = []
    for qq in range(8):
        for p in range(qq + 1):
            a = CACC + 4*qq
            src = "0" if (rr == 0 and p == 0) else q(a)
            mf.append(I(f"v_mfma_f32_16x16x32_bf16 {q(a)}, {q(b+4*p)}, {q(b+32+4*(qq-p))}, {src}", needs=[("ca", rr, qq)]))
    slots = [[] for _ in mf]
    if rr < 3: spread(slots, conv_reads(rr+1), 0, 34)
    if rr == 0: spread(slots, wd_reads(11) + wd_reads(12) + hl_setup, 2, 36)
    if rr == 1: spread(slots, wd_reads(13) + [poll_check(vP2, 2, "p2a")] + [h_load(i) for i in range(6)], 2, 36)
    if rr == 2: spread(slots, [[W(("hst", 1)), I("s_barrier")] + flag_store(3)] + [h_load(i) for i in range(6, 12)], 0, 36)
    if rr == 3: spread(slots, [h_load(i) for i in range(12, 16)], 0, 24)
    interleave(mf, slots)
P.emit(stamp())
xs = [I(f"v_lshrrev_b32 v4, 4, v{vLane}"), I(f"v_lshl_add_u32 v5, v4, 2, v{vLane}"), I("v_and_b32 v5, 15, v5"), I("v_lshl_add_u32 v5, v4, 4, v5"),
      I(f"s_lshl_b32 s{sT0}, s{sW}, 13"), I(f"v_lshl_add_u32 v8, v5, 4, s{sT0}"),
      I(f"v_and_b32 v4, 3, v{vLane}"), I(f"v_lshrrev_b32 v5, 2, v{vLane}"), I("v_lshl_add_u32 v5, v4, 2, v5"), I("v_and_b32 v5, 15, v5"), I("v_lshl_add_u32 v5, v4, 4, v5"),
      I(f"s_lshl_b32 s{sT0}, s{sW}, 11"), I(f"v_lshl_add_u32 v3, v5, 4, s{sT0}")]
P.emit(xs)
for qq in range(8):
    P(f"ds_write_b128 v8, {q(CACC+4*qq)} offset:{WR+1024*qq}", tag="xw")
    P.emit(h_load(16 + qq))
P(f"s_lshl_b32 s{sT0}, s{sW}, 10"); P(f"s_add_u32 s{sT0}, s{sT0}, {UB+512}"); P(f"v_lshl_add_u32 v7, v{vLane}, 3, s{sT0}")
P(f"s_lshl_b32 s{sT0}, s{sCB}, 5"); P(f"s_add_u32 s{sT0}, s{sT0}, s{sRR}"); P(f"s_lshl_b32 s{sT0}, s{sT0}, 13")
P(f"s_lshl_b32 s{sT1}, s{sW}, 11"); P(f"s_add_u32 s{sT0}, s{sT0}, s{sT1}"); P(f"s_add_u32 s{sT0}, s{sT0}, {WS_Y}")
P(f"s_and_b32 s{sD1}, s{sDD}, 0xffff"); P(f"s_lshl_b32 s{sD2}, s{sDD}, 16"); P(f"s_lshr_b32 s{sD3}, s{sDD}, 16"); P(f"s_and_b32 s{sDD}, s{sDD}, 0xffff0000")
UR = 88
for e in (0, 1):
    for ch in (0, 1): P(f"ds_read_b64 {q(UR+4*e+2*ch,2)}, v7 offset:{4608*ch+512*e}", tag="ur")
P.wait("xw"); P("s_barrier")
for e in (0, 1):
    for w2 in range(4): P(f"ds_read_b128 {q(CACC+16*e+4*w2)}, v3 offset:{WR+8192*w2+1024*e}", tag=("xr", e))
for i in range(24, 28): P.emit(h_load(i))
P.emit(poll_issue(vP2, "p2b"))
for e in (0, 1):
    b = CACC + 16 * e
    P.wait(("xr", e))
    for ch in (0, 1):
        for jj in (0, 2): P(f"v_pk_add_f32 {q(b+8*ch+jj,2)}, {q(b+8*ch+jj,2)}, {q(b+8*ch+4+jj,2)}")
    for ch in (0, 1):
        for jj in range(4):
            sd = [[sD1, sD2], [sD3, sDD]][ch][jj & 1]
            P(f"v_dot2c_f32_bf16 v{b+8*ch+jj}, s{sd}, v{UR+4*e+2*ch+(jj>>1)}")
    for jj in range(4): P(f"v_cvt_pk_bf16_f32 v{b+4+jj}, v{b+jj}, v{b+8+jj}")
    P(f"buffer_store_dwordx4 {q(b+4)}, v{vL16}, {WS}, s{sT0} offen offset:{1024*e} sc1", tag="yst")
P.emit(stamp())

GA = 128
def g2_mfma(i, mt):
    st, nt = HORD[i]; a = GA + 32*nt + 16*mt
    src = "0" if st == 0 else q(a, 16)
    return I(f"v_mfma_f32_32x32x16_bf16 {q(a,16)}, {q(wd_reg(st, mt),4,'a')}, {hreg(i)}, {src}", needs=[("h", i)])
mf = [g2_mfma(i, mt) for i in range(56) for mt in (0, 1)]
slots = [[] for _ in mf]
H1_AT = 12
slots[H1_AT] += poll_check(vP2, 3, "p2b")
for i in range(28, 56):
    s = H1_AT + 1 + 2 * (i - 28)
    assert i < 32 or s > 2 * (i - 32) + 1
    x = h_load(i); slots[s] += x if isinstance(x, list) else [x]
slots[30] += [W("yst"), I("s_barrier")] + flag_store(4)
XR = 56; vFA = 2
fin_setup = [I(f"v_lshrrev_b32 v5, 3, v{vLane}"), I(f"v_and_b32 v6, 7, v{vLane}"),
    I("v_mul_u32_u24 v8, 896, v5"), I("v_lshl_add_u32 v8, v6, 4, v8"),
    I(f"s_lshl_b32 s{sT0}, s{sRR}, 3"), I(f"s_add_u32 s{sT0}, s{sT0}, s{sW}"), I(f"s_mul_i32 s{sT0}, s{sT0}, {8*896}"),
    I(f"s_lshl_b32 s{sT1}, s{sCB}, 7"), I(f"s_add_u32 s{sD2}, s{sT0}, s{sT1}"), I(f"s_add_u32 s{sD3}, s{sD2}, {32*896}"),
    I(f"buffer_load_dwordx4 {q(XR)}, v8, {X}, s{sD2} offen", tag="xt"), I(f"buffer_load_dwordx4 {q(XR+4)}, v8, {X}, s{sD3} offen", tag="xt"),
    I("v_lshlrev_b32 v9, 1, v6"), I("v_xor_b32 v9, v9, v5"), I("v_lshlrev_b32 v9, 4, v9"), I("v_lshl_add_u32 v9, v5, 8, v9"),
    I(f"s_lshl_b32 s{sT0}, s{sW}, 11"), I(f"v_add_u32 v9, s{sT0}, v9"), I("v_xor_b32 v10, 16, v9"),
    I(f"v_lshrrev_b32 v11, 5, v{vLane}"), I(f"s_lshl_b32 s{sT0}, s{sW}, 1"), I(f"v_add_u32 v11, s{sT0}, v11"), I("v_xor_b32 v11, v11, v6"),
    I("v_lshlrev_b32 v11, 4, v11"), I("v_lshl_add_u32 v11, v6, 10, v11"), I("v_and_b32 v4, 3, v5"), I("v_lshl_add_u32 v11, v4, 2, v11"), I(f"v_add_u32 v11, {YT}, v11"),
    I(f"s_and_b32 s{sT0}, s{sRR}, 1"), I(f"s_lshl_b32 s{sT0}, s{sT0}, 3"), I(f"s_add_u32 s{sT0}, s{sT0}, s{sW}"), I(f"s_lshl_b32 s{sT0}, s{sT0}, 6"),
    I(f"s_add_u32 s{sT0}, s{sT0}, {ST}"), I(f"v_lshl_add_u32 v12, v5, 3, s{sT0}"),
    I(f"v_lshrrev_b32 v4, 5, v{vLane}"), I("v_xor_b32 v4, v4, v6"), I("v_lshlrev_b32 v4, 4, v4"), I(f"v_and_b32 v13, 31, v{vLane}"),
    I("v_lshl_add_u32 v4, v13, 8, v4"), I(f"s_lshl_b32 s{sT0}, s{sW}, 13"), I(f"v_add_u32 v{vWA}, s{sT0}, v4"),
    I(f"v_xor_b32 v{vWA+1}, 32, v{vWA}"), I(f"v_xor_b32 v{vWA+2}, 64, v{vWA}"), I(f"v_xor_b32 v{vWA+3}, 96, v{vWA}"),
    I(f"v_and_b32 v13, 15, v{vLane}"), I(f"s_lshl_b32 s{sT0}, s{sW}, 1"), I(f"v_xor_b32 v13, s{sT0}, v13"), I("v_lshlrev_b32 v13, 4, v13"),
    I(f"v_lshrrev_b32 v3, 4, v{vLane}"), I("v_lshl_add_u32 v3, v3, 13, v13"), I("v_xor_b32 v4, 16, v3"), I(f"v_add_u32 v4, {32768-1024}, v4"),
    I(f"s_lshl_b32 s{sT0}, s{sCB}, 2"), I(f"s_add_u32 s{sT0}, s{sT0}, s{sW}"), I(f"s_lshl_b32 s{sT0}, s{sT0}, 16"),
    I(f"s_lshl_b32 s{sT1}, s{sRR}, 8"), I(f"s_add_u32 s{sT0}, s{sT0}, s{sT1}"), I(f"s_add_u32 s{sD1}, s{sT0}, {WS_Y}"),
    I(f"s_lshl_b32 s{sT1}, s{sW}, 11"), I(f"s_add_u32 m0, s{sT1}, {YT}")]
spread(slots, fin_setup, 32, 68)
slots[70] += [poll_issue(vP1, "p3")]
slots[96] += poll_check(vP1, 4, "p3") + [I(f"buffer_load_dwordx4 v3, {WS}, s{sD1} offen sc1 lds", tag="yt"),
                                        I(f"buffer_load_dwordx4 v4, {WS}, s{sD1} offen offset:1024 sc1 lds", tag="yt")]
interleave(mf, slots)
P.emit(stamp())
for nt in (0, 1):
    for mt in (0, 1):
        for i in range(4): P(f"ds_write_b128 v{vWA+i}, {q(GA+32*nt+16*mt+4*i)} offset:{32768*nt+128*mt}", tag="rw")
P.wait("rw", "yt", "xt"); P("s_barrier")
RB = [128, 192]; YR = 64; SR = 72
for nt in (0, 1):
    for jj in range(4): P(f"ds_read_b32 v{YR+4*nt+jj}, v11 offset:{256*jj+128*nt}", tag=("yr", nt))
    P(f"ds_read_b64 {q(SR+2*nt,2)}, v12 offset:{256*nt}", tag=("yr", nt))
    for w2 in range(4):
        for e in (0, 1): P(f"ds_read_b128 {q(RB[nt]+8*w2+4*e)}, v{9+e} offset:{32768*nt+8192*w2}", tag=("rr", nt))
    b = RB[nt]; xf = b + 32; yf = b + 40; t = b + 48
    for d in range(4):
        P(f"v_lshlrev_b32 v{xf+2*d}, 16, v{XR+4*nt+d}"); P(f"v_and_b32 v{xf+2*d+1}, 0xffff0000, v{XR+4*nt+d}")
    P.wait(("yr", nt))
    for d in range(4):
        P(f"v_lshlrev_b32 v{yf+2*d}, 16, v{YR+4*nt+d}"); P(f"v_and_b32 v{yf+2*d+1}, 0xffff0000, v{YR+4*nt+d}")
    for d in range(8): P(f"v_fma_f32 v{t+d}, v{xf+d}, v{SR+2*nt}, v{SR+2*nt+1}")
    for d in range(0, 8, 2): P(f"v_pk_mul_f32 {q(yf+d,2)}, {q(yf+d,2)}, {q(t+d,2)}")
for nt in (0, 1):
    b = RB[nt]; xf = b + 32; yf = b + 40; t = b + 48
    P.wait(("rr", nt))
    for d in range(0, 8, 2): P(f"v_pk_add_f32 {q(b+d,2)}, {q(b+d,2)}, {q(b+8+d,2)}"); P(f"v_pk_add_f32 {q(b+16+d,2)}, {q(b+16+d,2)}, {q(b+24+d,2)}")
    for d in range(0, 8, 2): P(f"v_pk_add_f32 {q(b+d,2)}, {q(b+d,2)}, {q(b+16+d,2)}")
    for d in range(8): P(f"v_mul_f32 v{t+d}, 0xbfb8aa3b, v{b+d}")
    for d in range(8): P(f"v_exp_f32 v{t+d}, v{t+d}")
    for d in range(0, 8, 2): P(f"v_pk_mul_f32 {q(yf+d,2)}, {q(yf+d,2)}, {q(b+d,2)}")
    for d in range(8): P(f"v_add_f32 v{t+d}, 1.0, v{t+d}")
    for d in range(8): P(f"v_rcp_f32 v{t+d}, v{t+d}")
    for d in range(0, 8, 2): P(f"v_pk_fma_f32 {q(xf+d,2)}, {q(yf+d,2)}, {q(t+d,2)}, {q(xf+d,2)}")
    for d in range(4): P(f"v_cvt_pk_bf16_f32 v{b+d}, v{xf+2*d}, v{xf+2*d+1}")
    P(f"buffer_store_dwordx4 {q(b)}, v8, {OUT}, s{[sD2, sD3][nt]} offen", tag="ost")
if STAMP:
    P.wait_all(); P.emit(stamp())
    P("s_memrealtime s[16:17]", tag="stp"); P("v_mov_b32 v14, s16", needs=["stp"]); P(f"buffer_store_dword v14, v15, {WS}, s{sSTP} offen offset:252", tag="stpst")
P("Lend:"); P("s_endpgm")

ins, added = pad_hazards(P.out)
for i in ins: i.t = i.t.replace("NLINES", "200")
tmp = ins + [I(l) for s in slow for l in s.splitlines()]
total, mis = align8(tmp)
nl = min(255, (total - 64) // 128)
assert nl > 64
body = "\n".join(("" if i.t.endswith(":") else "    ") + i.t.replace("v_min_u32 v2, 200", f"v_min_u32 v2, {nl}") for i in tmp)
hdr = open(f"cdna_kernels/{NAME}.s.ref").read().split("; Override launch")[0]
txt = hdr + f"""; @launch grid=({NWG},1,1) block=(256,1,1) lds={LDS_SIZE}
; generated by gen/gen.py (hand-written schedule): one persistent launch, 224 workgroups
;   kv = shiftconv(k)*v -> GEMM1 (gate/up, LayerNorm folded in) -> Toeplitz-MFMA long conv -> GEMM2 + output gate
.amdgcn_target "amdgcn-amd-amdhsa--gfx950"
.text
.globl {NAME}_kernel
.p2align 8
.type {NAME}_kernel,@function
{NAME}_kernel:
{body}
.section .rodata,"a"
.p2align 6
.amdhsa_kernel {NAME}_kernel
  .amdhsa_next_free_vgpr 512
  .amdhsa_next_free_sgpr 102
  .amdhsa_accum_offset 256
  .amdhsa_group_segment_fixed_size 0
  .amdhsa_kernarg_size 104
  .amdhsa_user_sgpr_count 2
  .amdhsa_user_sgpr_kernarg_segment_ptr 1
  .amdhsa_system_sgpr_workgroup_id_x 1
  .amdhsa_float_denorm_mode_32 3
.end_amdhsa_kernel
"""
open(OUTP, "w").write(txt)
print(f"{OUTP}: {len(tmp)} lines, {total} bytes, nop states added {added}, misaligned 8B {mis}")
```

```python
import sys, os
sys.path.insert(0, os.path.dirname(os.path.abspath(__file__)))
from asmlib import *

NAME = "recurrent_scan__ssm_conv_h3__swiglu_ffn__prompt"
STAMP = "--stamp" in sys.argv
FINE = "--fine" in sys.argv
OUTP = [a for a in sys.argv[1:] if not a.startswith("--")]
OUTP = OUTP[0] if OUTP else f"cdna_kernels/{NAME}.s"

NWG = 224
WS_KVT = 0; WS_Y = 2 << 20; WS_H = 4 << 20; WS_FLAG = 11 << 20; WS_STAMP = 12 << 20; WS_SIZE = 16 << 20
WR = 0; PS = 49152; HC = 98304; UB = 131584; ST = 140800; CS = 142336; YT = 143360; LDS_SIZE = 151552
KV = HC; TB = HC + 20480
assert CS % 1024 == 0
sW, sR_, sCB, sRR, sF = 3, 4, 5, 6, 7
sXO = 8
sT0, sT1, sT2 = 15, 42, 43
X, K, V, SH, SK, WG, WU, WD, OUT, DBG, WS = (f"s[{b}:{b+3}]" for b in range(44, 88, 4))
sWm0, sPm0, sONE, sD0, sD1, sD2, sD3 = 88, 89, 90, 91, 92, 93, 94
sHS = 96
sSPIN = 95; sDD = 100; sSTP = 101
vLane = 1
vWA = 16; vWg = 20; vWu = 22; vXd = 24; vXr = 28; vL16 = 32; vWdD = 33; vWdR = 35
vFlag = 37; vP1 = 38; vP2 = 39; vPoll = 40; vS = 41; vQ = 43; vC = 45; vC1 = 47; vC2 = 48
vCA = 49; vCB = 50; vCS = 51; vBX = 52
vFlagW = 0
vF0 = 56
vF1 = 72
vXT = 96; vAX = 112; ACC = [128, 192]
def q(b, n=4, k="v"): return f"{k}[{b}:{b+n-1}]"
def wfrag(ks, j): return vF0 + 4 * (ks % 4) if j == 0 else vF1 + 12 * (ks % 2) + 4 * (j - 1)

P = Prog()
slow = []
nstamp = [0]
def stamp():
    if not STAMP: return []
    n = nstamp[0]; nstamp[0] += 1
    return [I(f"s_memtime s[16:17]", tag="stp"), I(f"v_mov_b32 v14, s16", needs=["stp"]),
            I(f"buffer_store_dword v14, v15, {WS}, s{sSTP} offen offset:{4*n}", tag="stpst")]

def srd(name, lo, size):
    b = int(name[2:name.index(":")])
    return [f"s_mov_b32 s{b}, s{lo}", f"s_and_b32 s{b+1}, s{lo+1}, 0xffff", f"s_mov_b32 s{b+2}, {size}", f"s_mov_b32 s{b+3}, 0x20000"]

def interleave(mf, fillers):
    for m, fl in zip(mf, fillers):
        P.emit(m); P.emit(fl)

def spread(slots, items, lo=0, hi=None):
    hi = len(slots) if hi is None else hi
    n = hi - lo
    for k, it in enumerate(items):
        s = lo + (k * n) // len(items)
        slots[s].extend(it if isinstance(it, list) else [it])

def poll_ld(voff, stage):
    if stage == 1: return f"buffer_load_ubyte v{vPoll}, v{voff}, {DBG}, 0 offen sc1"
    return f"buffer_load_dword v{vPoll}, v{voff}, {WS}, 0 offen sc1"
def poll_issue(voff, stage, tag): return I(poll_ld(voff, stage), tag=tag)
def poll_check(voff, stage, tag):
    n = len(slow)
    slow.append(f"""Lslow{n}:
    s_mov_b32 s{sSPIN}, 0
Lspin{n}:
    s_sleep {8 if stage == 1 else 1}
    {poll_ld(voff, stage)}
    s_add_u32 s{sSPIN}, s{sSPIN}, 1
    s_waitcnt vmcnt(0)
    v_cmp_gt_u32 vcc, {stage}, v{vPoll}
    s_cmp_gt_u32 s{sSPIN}, 0x40000
    s_cbranch_scc1 Lback{n}
    s_cbranch_vccnz Lspin{n}
    s_branch Lback{n}""")
    return [I(f"v_cmp_gt_u32 vcc, {stage}, v{vPoll}", needs=[tag]), I("s_nop 0"), I(f"s_cbranch_vccnz Lslow{n}"), I(f"Lback{n}:")]
def flag_store(stage):
    if stage == 1: return [I(f"v_mov_b32 v2, 1"), I(f"buffer_store_byte v2, v{vFlag}, {DBG}, 0 offen sc1", tag="flag1")]
    return [I(f"v_mov_b32 v2, {stage}"), I(f"buffer_store_dword v2, v{vFlagW}, {WS}, 0 offen sc1", tag=f"flag{stage}")]

P("s_cmp_ge_u32 s2, %d" % NWG); P("s_cbranch_scc1 Lend")
P("s_load_dwordx16 s[16:31], s[0:1], 0", tag="ka"); P("s_load_dwordx8 s[32:39], s[0:1], 64", tag="ka"); P("s_load_dwordx2 s[40:41], s[0:1], 96", tag="ka")
P("s_getpc_b64 s[42:43]")
P("v_min_u32 v2, NLINES, v0"); P("v_lshlrev_b32 v2, 7, v2"); P("v_mov_b32 v3, s43")
P("v_add_co_u32 v2, vcc, s42, v2"); P("v_addc_co_u32 v3, vcc, 0, v3, vcc")
P("global_load_dword v250, v[2:3], off", tag="pf")
P(f"v_and_b32 v{vLane}, 63, v0"); P("v_lshrrev_b32 v5, 6, v0"); P(f"v_readfirstlane_b32 s{sW}, v5")
P("s_and_b32 s8, s2, 7"); P("s_lshr_b32 s9, s2, 3")
P("s_mul_i32 s10, s9, 37"); P("s_lshr_b32 s10, s10, 8")
P("s_mul_i32 s11, s10, 7"); P(f"s_sub_u32 s{sCB}, s9, s11")
P("s_lshr_b32 s11, s8, 1"); P("s_and_b32 s12, s8, 1")
P(f"s_lshl_b32 s{sR_}, s11, 2"); P(f"s_add_u32 s{sR_}, s{sR_}, s10")
P(f"s_lshl_b32 s{sRR}, s{sR_}, 1"); P(f"s_add_u32 s{sRR}, s{sRR}, s12")
P(f"s_mul_i32 s{sF}, s12, 7"); P(f"s_add_u32 s{sF}, s{sF}, s{sCB}")
P("s_lshl_b32 s10, s10, 1"); P(f"s_add_u32 s10, s10, s{sCB}"); P("s_add_u32 s10, s10, s11")
P("s_mul_i32 s9, s10, 37"); P("s_lshr_b32 s9, s9, 8"); P("s_mul_i32 s9, s9, 7"); P("s_sub_u32 s10, s10, s9")
P("s_lshl_b32 s8, s10, 7")
for c in range(1, 7):
    P(f"s_add_u32 s{sXO+c}, s{sXO+c-1}, 128"); P(f"s_cmp_eq_u32 s{sXO+c}, 896"); P(f"s_cselect_b32 s{sXO+c}, 0, s{sXO+c}")
P(f"s_lshl_b32 s{sWm0}, s{sW}, 12"); P(f"s_mul_i32 s{sPm0}, s{sW}, 12288"); P(f"s_add_u32 s{sPm0}, s{sPm0}, {PS}")
P(f"s_mov_b32 s{sONE}, 0x3f803f80")
P(f"v_lshrrev_b32 v5, 3, v{vLane}"); P(f"v_and_b32 v6, 7, v{vLane}"); P(f"v_bfe_u32 v7, v{vLane}, 4, 1")
P(f"v_lshlrev_b32 v{vL16}, 4, v{vLane}")
P("v_lshlrev_b32 v8, 2, v7"); P("v_xor_b32 v8, v8, v6"); P("v_lshlrev_b32 v8, 4, v8")
P("v_mul_u32_u24 v9, 896, v5"); P("v_add_u32 v8, v8, v9")
P(f"s_lshl_b32 s{sT0}, s{sCB}, 7"); P(f"s_mul_i32 s{sT1}, s{sW}, {16*896}"); P(f"s_add_u32 s{sT0}, s{sT0}, s{sT1}")
P(f"v_add_u32 v{vWdD}, s{sT0}, v8"); P(f"v_add_u32 v{vWdD+1}, {8*896-1024}, v{vWdD}")
P(f"s_mul_i32 s{sT1}, s{sRR}, {64*896}")
P(f"v_add_u32 v10, s{sT1}, v{vWdD}")
P(f"v_add_u32 v11, {8*896-1024}, v10"); P(f"v_subrev_u32 v12, {8*896}, v10")
P.wait("ka")
P.emit(srd(K, 18, 1835008)); P.emit(srd(V, 20, 1835008))
P(f"s_mul_i32 s{sT2}, s{sW}, 5120"); P(f"s_add_u32 s{sT2}, s{sT2}, {KV}")
P(f"s_mov_b32 m0, s{sT2}"); P(f"buffer_load_dwordx4 v12, {K}, 0 offen lds", tag="kv")
P(f"s_add_u32 m0, s{sT2}, 1024"); P(f"buffer_load_dwordx4 v10, {K}, 0 offen lds", tag="kv"); P(f"buffer_load_dwordx4 v11, {K}, 0 offen offset:1024 lds", tag="kv")
P(f"s_add_u32 m0, s{sT2}, 3072"); P(f"buffer_load_dwordx4 v10, {V}, 0 offen lds", tag="kv"); P(f"buffer_load_dwordx4 v11, {V}, 0 offen offset:1024 lds", tag="kv")
P.emit(srd(SH, 22, 3584))
P(f"s_lshl_b32 s{sT0}, s{sCB}, 9"); P(f"v_lshlrev_b32 v9, 3, v{vLane}")
P(f"buffer_load_dwordx2 v[128:129], v9, {SH}, s{sT0} offen", tag="kv")
P.emit(srd(X, 16, 1835008)); P.emit(srd(WG, 30, 1605632)); P.emit(srd(WU, 32, 1605632))
P(f"s_lshl_b32 s{sT0}, s{sR_}, 2"); P(f"s_add_u32 s{sT0}, s{sT0}, s{sW}"); P(f"s_mul_i32 s{sT0}, s{sT0}, {32*896}")
P(f"v_lshrrev_b32 v9, 4, v{vLane}"); P("v_xor_b32 v9, v9, v6"); P("v_lshlrev_b32 v9, 4, v9")
P("v_mul_u32_u24 v13, 896, v5"); P(f"v_add_u32 v13, s{sT0}, v13")
P(f"v_add_u32 v{vXd}, v13, v9"); P("v_xor_b32 v9, 64, v9"); P("v_add_u32 v9, v13, v9")
P(f"v_add_u32 v{vXd+1}, {8*896-1024}, v9"); P(f"v_add_u32 v{vXd+2}, {16*896-2048}, v{vXd}"); P(f"v_add_u32 v{vXd+3}, {24*896-3072}, v9")
P(f"s_mul_i32 s{sT0}, s{sW}, {16*3584}"); P(f"s_lshl_b32 s{sT1}, s{sF}, 8"); P(f"s_add_u32 s{sT0}, s{sT0}, s{sT1}")
P("v_mul_u32_u24 v13, 3584, v5"); P(f"v_add_u32 v13, s{sT0}, v13")
P("v_lshlrev_b32 v9, 1, v7"); P("v_xor_b32 v9, v9, v6"); P("v_lshlrev_b32 v9, 4, v9")
P(f"v_add_u32 v{vWg}, v13, v9"); P("v_xor_b32 v9, 64, v9"); P(f"v_add_u32 v{vWu}, v13, v9")
P(f"v_add_u32 v{vWg+1}, {8*3584-1024}, v{vWg}"); P(f"v_add_u32 v{vWu+1}, {8*3584-1024}, v{vWu}")

def x_loads(c):
    s = c % 3
    return [[I(f"s_add_u32 m0, s{sPm0}, {4096*s}"), I(f"buffer_load_dwordx4 v{vXd}, {X}, s{sXO+c} offen lds", tag=("x", c))]] + \
           [I(f"buffer_load_dwordx4 v{vXd+i}, {X}, s{sXO+c} offen offset:{1024*i} lds", tag=("x", c)) for i in (1, 2, 3)]
def w_loads(c):
    s = c % 3; pre = []
    if c == 7: pre = [I(f"v_add_u32 v{r}, 128, v{r}") for r in (vWg, vWg+1, vWu, vWu+1)]
    return [pre + [I(f"s_mul_i32 s{sD0}, s{sXO+c%7}, 1792"), I(f"s_add_u32 m0, s{sWm0}, {WR+16384*s}"),
             I(f"buffer_load_dwordx4 v{vWg}, {WG}, s{sD0} offen lds", tag=("w", c))],
            I(f"buffer_load_dwordx4 v{vWg+1}, {WG}, s{sD0} offen offset:1024 lds", tag=("w", c)),
            [I(f"s_add_u32 m0, s{sWm0}, {WR+16384*s+2048}"), I(f"buffer_load_dwordx4 v{vWu}, {WU}, s{sD0} offen lds", tag=("w", c))],
            I(f"buffer_load_dwordx4 v{vWu+1}, {WU}, s{sD0} offen offset:1024 lds", tag=("w", c))]
P.emit(x_loads(0)); P.emit(w_loads(0)); P.emit(x_loads(1))
P.emit(srd(SK, 24, 1835008)); P.emit(srd(WD, 34, 1605632)); P.emit(srd(OUT, 36, 1835008)); P.emit(srd(DBG, 38, 256)); P.emit(srd(WS, 40, WS_SIZE))
P(f"s_lshl_b32 s{sT0}, s{sCB}, 5"); P(f"s_add_u32 s{sT0}, s{sT0}, s{sRR}")
P(f"s_lshl_b32 s{sT1}, s{sT0}, 2"); P(f"s_load_dword s{sDD}, s[26:27], s{sT1}", tag="dd")
P(f"v_mov_b32 v9, s{sT0}"); P("v_mov_b32 v13, 0x100000"); P("v_cmp_eq_u32 vcc, 0, v0"); P(f"v_cndmask_b32 v{vFlag}, v13, v9, vcc")
P(f"v_lshlrev_b32 v{vFlagW}, 7, v{vFlag}"); P(f"v_add_u32 v{vFlagW}, {WS_FLAG}, v{vFlagW}"); P("v_mov_b32 v13, 0")
P(f"buffer_store_dword v13, v{vFlagW}, {WS}, 0 offen sc1", tag="kst")
P(f"s_lshl_b32 s{sT1}, s{sCB}, 5"); P(f"v_and_b32 v9, 31, v{vLane}"); P(f"v_add_u32 v{vP1}, s{sT1}, v9")
P(f"v_min_u32 v9, 13, v9"); P("v_lshrrev_b32 v13, 1, v9"); P("v_lshlrev_b32 v13, 5, v13"); P("v_and_b32 v9, 1, v9")
P(f"s_lshl_b32 s{sT1}, s{sR_}, 1"); P(f"v_add3_u32 v{vP2}, v13, v9, s{sT1}")
if STAMP:
    P(f"s_lshl_b32 s{sSTP}, s2, 2"); P(f"s_add_u32 s{sSTP}, s{sSTP}, s{sW}"); P(f"s_lshl_b32 s{sSTP}, s{sSTP}, 8"); P(f"s_add_u32 s{sSTP}, s{sSTP}, {WS_STAMP}")
    P("v_mov_b32 v13, 0x40000000"); P(f"v_cmp_eq_u32 vcc, 0, v{vLane}"); P("v_cndmask_b32 v15, v13, 0, vcc")
    P("s_memrealtime s[16:17]", tag="stp"); P("v_mov_b32 v14, s16", needs=["stp"]); P(f"buffer_store_dword v14, v15, {WS}, s{sSTP} offen offset:248", tag="stpst")
P.emit(stamp())
P(f"v_and_b32 v2, 3, v{vLane}"); P(f"v_bfe_u32 v3, v{vLane}, 2, 2"); P(f"v_bfe_u32 v4, v{vLane}, 4, 1"); P(f"v_lshrrev_b32 v9, 5, v{vLane}")
P("v_lshlrev_b32 v10, 3, v2"); P("v_lshl_add_u32 v10, v3, 7, v10")
P("v_lshrrev_b32 v11, 1, v3")
P("v_lshl_add_u32 v12, v4, 11, v10"); P("v_lshl_add_u32 v12, v9, 10, v12")
P("v_lshl_add_u32 v13, v4, 1, v11"); P(f"v_xor_b32 v13, s{sW}, v13")
P(f"v_lshl_add_u32 v{vWA}, v13, 5, v12")
for j in (1, 2, 3): P(f"v_xor_b32 v{vWA+j}, {32*j}, v{vWA}")
P("v_lshl_add_u32 v12, v9, 9, v10"); P("v_lshl_add_u32 v13, v11, 1, v4"); P("v_lshl_add_u32 v12, v13, 5, v12")
P(f"v_add_u32 v{vWdR}, s{sPm0}, v12"); P(f"v_xor_b32 v{vWdR+1}, 64, v{vWdR}")
P(f"v_lshrrev_b32 v12, 4, v{vLane}"); P("v_lshlrev_b32 v13, 1, v11"); P("v_xor_b32 v13, v13, v12"); P("v_lshl_add_u32 v130, v13, 5, v10")
P(f"v_add_u32 v130, s{sT2}, v130")
P(f"s_lshr_b32 s{sT0}, s{sW}, 1"); P(f"s_and_b32 s{sT1}, s{sW}, 1"); P(f"s_lshl_b32 s{sT1}, s{sT1}, 8")
P(f"s_mul_i32 s{sD0}, s{sT0}, 16640"); P(f"s_add_u32 s{sD0}, s{sD0}, s{sT1}"); P(f"s_add_u32 s{sD0}, s{sD0}, {HC+56}")
P(f"s_mul_i32 s{sD1}, s{sT0}, 4608"); P(f"s_sub_u32 s{sD1}, s{sD1}, s{sT1}"); P(f"s_add_u32 s{sD1}, s{sD1}, {UB+288}")
P("v_mul_u32_u24 v13, 4160, v3"); P("v_lshl_add_u32 v13, v2, 3, v13"); P("v_lshlrev_b32 v12, 4, v12"); P("v_sub_u32 v13, v13, v12"); P(f"v_add_u32 v{vCA}, s{sD0}, v13")
P(f"v_and_b32 v13, 15, v{vLane}"); P("v_lshl_add_u32 v13, v13, 5, v12"); P(f"v_add_u32 v{vCB}, s{sD1}, v13")
P(f"v_and_b32 v12, 31, v{vLane}"); P(f"v_bfe_u32 v13, v{vLane}, 1, 3"); P("v_xor_b32 v13, v13, v9"); P("v_lshlrev_b32 v13, 4, v13")
P("v_lshl_add_u32 v13, v12, 7, v13"); P(f"v_add_u32 v{vXr}, s{sPm0}, v13")
for j in (1, 2, 3): P(f"v_xor_b32 v{vXr+j}, {32*j}, v{vXr}")
P(f"s_lshl_b32 s{sT0}, s{sW}, 8"); P(f"s_add_u32 s{sT0}, s{sT0}, {CS}"); P(f"v_lshl_add_u32 v{vCS}, v{vLane}, 2, s{sT0}")
P(f"s_lshl_b32 s{sT0}, s{sR_}, 2"); P(f"s_add_u32 s{sT0}, s{sT0}, s{sW}"); P(f"s_mul_i32 s{sT0}, s{sT0}, 114688")
P(f"s_lshl_b32 s{sT1}, s{sF}, 13"); P(f"s_add_u32 s{sT0}, s{sT0}, s{sT1}"); P(f"s_add_u32 s{sT0}, s{sT0}, {WS_H}")
for j in range(4):
    P(f"s_xor_b32 s{sT1}, s{sW}, {j}"); P(f"s_lshl_b32 s{sT1}, s{sT1}, 10"); P(f"s_add_u32 s{sHS+j}, s{sT0}, s{sT1}")
for r in list(range(vS, vS+6)) + list(range(vBX, vBX+4)) + list(range(vAX, vAX+16)): P(f"v_mov_b32 v{r}, 0")
P(f"v_mul_u32_u24 v13, 4608, v9"); P(f"v_lshl_add_u32 v13, v12, 4, v13"); P(f"v_add_u32 v13, {UB}, v13")
P(f"ds_write_b128 v13, {q(vAX)}", tag="z")
P.emit(w_loads(1))

KD = 132; VD = 142; KO = 150; TMP = 160
for b in range(5): P(f"ds_read_b64_tr_b16 {q(KD+2*b,2)}, v130 offset:{512*(b+1)}", needs=["kv"], tag="kd")
for b in range(4): P(f"ds_read_b64_tr_b16 {q(VD+2*b,2)}, v130 offset:{3072+512*b}", tag="vd")
P.emit(x_loads(2)); P.emit(w_loads(2))
Wa, Wb, Wc, Wd_, We = 2, 3, 4, 10, 11
P(f"v_alignbit_b32 v{Wa}, v129, v129, 16"); P(f"v_alignbit_b32 v{Wb}, v128, v128, 16")
P(f"v_and_b32 v{Wc}, 0xffff0000, v129"); P(f"v_and_b32 v{We}, 0xffff, v128")
P(f"v_and_b32 v12, 0xffff, v129"); P(f"v_and_b32 v13, 0xffff0000, v128"); P(f"v_or_b32 v{Wd_}, v12, v13")
P.wait("vd")
for d in range(8): P(f"v_dot2_f32_bf16 v{TMP+2*d}, v{KD+d}, v{Wc}, 0"); P(f"v_dot2_f32_bf16 v{TMP+2*d+1}, v{KD+d+1}, v{Wa}, 0")
for d in range(8): P(f"v_dot2_f32_bf16 v{TMP+2*d}, v{KD+d+1}, v{Wd_}, v{TMP+2*d}"); P(f"v_dot2_f32_bf16 v{TMP+2*d+1}, v{KD+d+2}, v{Wb}, v{TMP+2*d+1}")
for d in range(8): P(f"v_dot2_f32_bf16 v{TMP+2*d}, v{KD+d+2}, v{We}, v{TMP+2*d}")
for d in range(8): P(f"v_lshlrev_b32 v{TMP+16+2*d}, 16, v{VD+d}"); P(f"v_and_b32 v{TMP+17+2*d}, 0xffff0000, v{VD+d}")
for d in range(8): P(f"v_pk_mul_f32 {q(TMP+2*d,2)}, {q(TMP+2*d,2)}, {q(TMP+16+2*d,2)}")
for d in range(8): P(f"v_cvt_pk_bf16_f32 v{KD+d}, v{TMP+2*d}, v{TMP+2*d+1}")
P(f"s_lshl_b32 s{sT0}, s{sW}, 1"); P(f"v_xor_b32 v12, s{sT0}, v6"); P("v_lshlrev_b32 v12, 4, v12"); P(f"v_lshl_add_u32 v12, v{vLane}, 7, v12")
P(f"v_add_u32 v12, {TB}, v12"); P("v_xor_b32 v13, 16, v12")
P(f"ds_write_b128 v12, {q(KD)}", tag="tw"); P(f"ds_write_b128 v13, {q(KD+4)}", tag="tw")
P("v_xor_b32 v12, v5, v6"); P("v_lshlrev_b32 v12, 4, v12"); P("v_lshl_add_u32 v12, v5, 7, v12")
P(f"s_lshl_b32 s{sT0}, s{sW}, 11"); P(f"s_add_u32 s{sT0}, s{sT0}, {TB}"); P(f"v_add_u32 v12, s{sT0}, v12")
P("v_lshlrev_b32 v13, 4, v6"); P("v_lshl_add_u32 v13, v5, 12, v13")
P(f"s_lshl_b32 s{sT0}, s{sCB}, 2"); P(f"s_add_u32 s{sT0}, s{sT0}, s{sW}"); P(f"s_lshl_b32 s{sT0}, s{sT0}, 16")
P(f"s_lshl_b32 s{sT1}, s{sRR}, 7"); P(f"s_add_u32 s{sT0}, s{sT0}, s{sT1}"); P(f"s_add_u32 s{sT1}, s{sT0}, 32768")
P.wait("tw", ("w", 0), "dd"); P("s_barrier")
P.emit(stamp())

def w_reads(c, ks, js=(0, 1, 2, 3)):
    o = []
    for j in js:
        for h in (0, 1):
            o.append(I(f"ds_read_b64_tr_b16 {q(wfrag(ks, j)+2*h, 2)}, v{vWA+j} offset:{WR+16384*(c%3)+4096*ks+512*h}", tag=("wf", c, ks, j)))
    return o
def x_reads(c, ks):
    off = 4096 * (c % 3)
    return [I(f"ds_read_b128 {q(16*c+4*ks, 4, 'a')}, v{vXr+ks} offset:{off}", tag=("xf", c, ks)),
            I(f"ds_read_b128 {q(vXT+4*ks)}, v{vXr+ks} offset:{off}", tag=("xt", c, ks))]
def g1_mfma(c, ks, j):
    a = ACC[c // 7] + 16 * j; cc = c % 7
    src = "0" if (cc == 0 and ks == 0) else q(a, 16)
    needs = [("wf", c, ks, j | 1)] + ([("xf", c, ks)] if c < 7 else [])
    return I(f"v_mfma_f32_32x32x16_bf16 {q(a,16)}, {q(wfrag(ks,j))}, {q(16*cc+4*ks,4,'a')}, {src}", needs=needs)
def wd_where(u):
    if u in (8, 10, 12): return ("wr", {8: 11, 10: 12, 12: 13}[u] % 3)
    return ("ps", {0:1,1:2,2:0,3:1,4:2,5:0,6:1,7:2,9:0,11:1,13:2}[u])
def wd_loads(u):
    kind, s = wd_where(u); o = []
    for k in (0, 1):
        st = 2 * u + k; g, f2 = st // 14, st % 14
        m0 = f"s_add_u32 m0, s{sPm0}, {4096*s+2048*k}" if kind == "ps" else f"s_add_u32 m0, s{sWm0}, {WR+16384*s+2048*k}"
        o.append([I(f"s_mov_b32 s{sD1}, {(128*f2+64*g)*896}"), I(m0), I(f"buffer_load_dwordx4 v{vWdD}, {WD}, s{sD1} offen lds", tag=("wd", u))])
        o.append(I(f"buffer_load_dwordx4 v{vWdD+1}, {WD}, s{sD1} offen offset:1024 lds", tag=("wd", u)))
    return o
def wd_reg(st, mt): return (112 + 8 * st if st < 14 else 8 * (st - 14)) + 4 * mt
vWdR2 = vXd
def wd_reads(u):
    kind, s = wd_where(u); o = []
    for k in (0, 1):
        for mt in (0, 1):
            for h in (0, 1):
                ar, off = (vWdR, 4096 * s) if kind == "ps" else (vWdR2, 16384 * s)
                o.append(I(f"ds_read_b64_tr_b16 {q(wd_reg(2*u+k, mt)+2*h, 2, 'a')}, v{ar+mt} offset:{off+2048*k+1024*h}", needs=[("wd", u)], tag=("wdf", u)))
    return o
def silu_tile(g, j, packed, T):
    a = ACC[g] + 16 * j; o = []
    for p in range(4):
        g0, g1, u0, u1 = a+2*p, a+2*p+1, a+8+2*p, a+9+2*p
        t0, t1 = T + 4 + 2*(p % 2), T + 5 + 2*(p % 2)
        if packed:
            o += [I(f"v_mul_f32 v{t0}, v{vC1}, v{g0}"), I(f"v_mul_f32 v{t1}, v{vC1}, v{g1}"),
                  I(f"v_exp_f32 v{t0}, v{t0}"), I(f"v_exp_f32 v{t1}, v{t1}"),
                  I(f"v_pk_mul_f32 {q(u0,2)}, {q(g0,2)}, {q(u0,2)}"),
                  I(f"v_fma_f32 v{t0}, v{t0}, v{vC2}, v{vC2}"), I(f"v_fma_f32 v{t1}, v{t1}, v{vC2}, v{vC2}"),
                  I(f"v_rcp_f32 v{t0}, v{t0}"), I(f"v_rcp_f32 v{t1}, v{t1}"), I("s_nop 0"),
                  I(f"v_pk_mul_f32 {q(u0,2)}, {q(u0,2)}, {q(t0,2)}"),
                  I(f"v_cvt_pk_bf16_f32 v{T+p}, v{u0}, v{u1}")]
        else:
            o += [I(f"v_mul_f32 v{t0}, v{vC1}, v{g0}"), I(f"v_mul_f32 v{t1}, v{vC1}, v{g1}"),
                  I(f"v_exp_f32 v{t0}, v{t0}"), I(f"v_mul_f32 v{u0}, v{g0}, v{u0}"), I(f"v_exp_f32 v{t1}, v{t1}"),
                  I(f"v_fma_f32 v{t0}, v{t0}, v{vC2}, v{vC2}"), I(f"v_mul_f32 v{u1}, v{g1}, v{u1}"), I(f"v_rcp_f32 v{t0}, v{t0}"),
                  I(f"v_fma_f32 v{t1}, v{t1}, v{vC2}, v{vC2}"), I(f"v_rcp_f32 v{t1}, v{t1}"),
                  I(f"v_mul_f32 v{u0}, v{u0}, v{t0}"), I(f"v_mul_f32 v{u1}, v{u1}, v{t1}"),
                  I(f"v_cvt_pk_bf16_f32 v{T+p}, v{u0}, v{u1}")]
    o.append(I(f"buffer_store_dwordx4 {q(T)}, v{vL16}, {WS}, s{sHS+j} offen sc1", tag=("hst", g)))
    return o
def bf16r(d, s):
    return [I(f"v_cvt_pk_bf16_f32 v{d}, v{s}, v{s}"), I(f"v_and_b32 v{d}, 0xffff0000, v{d}")]
def stats_final():
    o = [I(f"v_add_f32 v{vS}, v{vS}, v{vS+1}"), I(f"v_add_f32 v{vQ}, v{vQ}, v{vQ+1}"),
         I(f"v_mov_b32 v{vS+1}, v{vS}"), I(f"v_mov_b32 v{vQ+1}, v{vQ}"),
         I(f"v_permlane32_swap_b32 v{vS}, v{vS+1}"), I(f"v_permlane32_swap_b32 v{vQ}, v{vQ+1}"),
         I(f"v_add_f32 v{vS}, v{vS}, v{vS+1}"), I(f"v_add_f32 v{vQ}, v{vQ}, v{vQ+1}"),
         I(f"v_mul_f32 v{vS}, 0x3b124925, v{vS}"), I(f"v_mul_f32 v{vQ}, 0x3b124925, v{vQ}"),
         I(f"v_fma_f32 v{vQ}, -v{vS}, v{vS}, v{vQ}"), I(f"v_max_f32 v{vQ}, 0, v{vQ}"),
         I(f"v_cvt_pk_bf16_f32 v{vBX}, -v{vS}, -v{vS}")]
    o += bf16r(vQ, vQ) + [I(f"v_add_f32 v{vQ}, 0x3727c5ac, v{vQ}")] + bf16r(vQ, vQ) + [I(f"v_sqrt_f32 v{vQ}, v{vQ}")] + bf16r(vQ, vQ)
    o += [I(f"v_rcp_f32 v2, v{vQ}"), I(f"v_mul_f32 v{vC2}, v{vQ}, v{vQ}"), I(f"v_and_b32 v3, 0xffff0000, v{vBX}"),
          I(f"v_mul_f32 v{vC1}, 0xbfb8aa3b, v2"), I("v_mul_f32 v3, v3, v2"),
          I(f"v_and_b32 v4, 31, v{vLane}"), I(f"v_lshlrev_b32 v4, 3, v4"), I(f"s_lshl_b32 s{sT0}, s{sW}, 8"), I(f"s_add_u32 s{sT0}, s{sT0}, {ST}"),
          I(f"v_add_u32 v4, s{sT0}, v4"), I("ds_write_b64 v4, v[2:3]", tag="stw")]
    return o
def cs_final():
    return [I(f"v_add_f32 v{vC}, v{vC}, v{vC+1}")] + bf16r(vC+1, vC) + [I(f"v_sub_f32 v{vC+1}, v{vC}, v{vC+1}"),
            I(f"v_cvt_pk_bf16_f32 v4, v{vC}, v{vC+1}"), I(f"ds_write_b32 v{vCS}, v4", tag="csw"),
            I(f"v_mov_b32 v{vC}, 0"), I(f"v_mov_b32 v{vC+1}, 0")]
def cs_reads(g):
    o = []
    for j in range(4):
        if j == 0: o.append(I(f"ds_read_b32 v{vAX}, v{vCS}", tag=("csr", g)))
        else: o.append([I(f"v_xor_b32 v4, {256*j}, v{vCS}"), I(f"ds_read_b32 v{vAX+4*j}, v4", tag=("csr", g))])
    return o
def ext_mfma(g, j):
    a = ACC[g] + 16 * j
    return I(f"v_mfma_f32_32x32x16_bf16 {q(a,16)}, {q(vAX+4*j)}, {q(vBX)}, {q(a,16)}", needs=[("csr", g)])

HR = [2, 8]
def h_loads():
    o = [[I(f"s_lshl_b32 s{sT0}, s{sCB}, 5"), I(f"s_add_u32 s{sT0}, s{sT0}, s{sRR}"), I(f"s_lshl_b32 s{sT0}, s{sT0}, 13"),
          I(f"s_lshl_b32 s{sT1}, s{sW}, 11"), I(f"s_add_u32 s{sT0}, s{sT0}, s{sT1}"),
          I(f"buffer_load_dwordx4 v[4:7], v{vL16}, {SK}, s{sT0} offen", tag="hr")],
         I(f"buffer_load_dwordx4 v[10:13], v{vL16}, {SK}, s{sT0} offen offset:1024", tag="hr"),
         I(f"buffer_load_dwordx2 v[8:9], v{vL16}, {SK}, s{sT0} offen offset:1016", tag="hr"),
         [I(f"s_and_b32 s{sT1}, s{sT1}, 2048"), I(f"s_sub_u32 s{sT0}, s{sT0}, s{sT1}"), I(f"s_sub_u32 s{sT1}, s{sT1}, 8"),
          I(f"v_add_u32 v3, s{sT1}, v{vL16}"), I(f"buffer_load_dwordx2 v[2:3], v3, {SK}, s{sT0} offen", tag="hr")]]
    return o
def h_build(T):
    o = [[I(f"s_lshr_b32 s{sT0}, s{sW}, 1"), I(f"s_mul_i32 s{sT0}, s{sT0}, 16640"), I(f"s_and_b32 s{sT1}, s{sW}, 1"), I(f"s_lshl_b32 s{sT1}, s{sT1}, 11")],
         [I(f"s_add_u32 s{sT0}, s{sT0}, s{sT1}"), I(f"s_add_u32 s{sT0}, s{sT0}, {HC+32}"), I(f"v_add_u32 v{T}, s{sT0}, v{vL16}")]]
    for un in (0, 1):
        R = HR[un]; off = 1024 * un
        o.append(I(f"ds_write_b128 v{T}, {q(R+2)} offset:{off}", needs=["hr"], tag="hw"))
        o += [I(f"v_alignbit_b32 v{T+2+d}, v{R+2+d}, v{R+1+d}, 16") for d in range(4)]
        o.append(I(f"ds_write_b128 v{T}, {q(T+2)} offset:{off+4160}", tag="hw"))
        o += [I(f"v_mov_b32 v{T+6+d}, v{R+1+d}") for d in range(4)]
        o.append(I(f"ds_write_b128 v{T}, {q(T+6)} offset:{off+8320}", tag="hw"))
        o += [I(f"v_alignbit_b32 v{T+2+d}, v{R+1+d}, v{R+d}, 16") for d in range(4)]
        o.append(I(f"ds_write_b128 v{T}, {q(T+2)} offset:{off+12480}", tag="hw"))
    o += [[I(f"v_lshrrev_b32 v{T}, 3, v{vLane}"), I(f"v_mul_u32_u24 v{T}, 4160, v{T}"), I(f"v_and_b32 v{T+1}, 7, v{vLane}")],
          [I(f"v_lshl_add_u32 v{T}, v{T+1}, 2, v{T}"), I(f"v_add_u32 v{T}, {HC}, v{T}"), I(f"ds_write_b32 v{T}, v{vBX+1}", tag="hw")]]
    return o
def u_loads():
    return [[I(f"s_lshl_b32 s{sT0}, s{sCB}, 5"), I(f"s_add_u32 s{sT0}, s{sT0}, s{sRR}"), I(f"s_lshl_b32 s{sT0}, s{sT0}, 13"),
             I(f"s_lshl_b32 s{sT1}, s{sW}, 11"), I(f"s_add_u32 s{sT0}, s{sT0}, s{sT1}")],
            [I(f"s_lshr_b32 s{sT2}, s{sW}, 1"), I(f"s_lshl_b32 s{sT2}, s{sT2}, 9"), I(f"s_add_u32 s{sT1}, s{sT1}, s{sT2}"),
             I(f"s_add_u32 m0, s{sT1}, {UB+512}"), I(f"buffer_load_dwordx4 v{vL16}, {WS}, s{sT0} offen sc1 lds", tag="u")],
            I(f"buffer_load_dwordx4 v{vL16}, {WS}, s{sT0} offen offset:1024 sc1 lds", tag="u")]

P.emit(x_reads(0, 0)); P.emit(w_reads(0, 0))
P(f"ds_read_b128 {q(192)}, v12", tag="tr"); P(f"ds_read_b128 {q(196)}, v12 offset:1024", tag="tr")
pend = [I(f"buffer_store_dwordx4 {q(192)}, v13, {WS}, s{sT0} offen sc1", needs=["tr"], tag="kst"),
        I(f"buffer_store_dwordx4 {q(196)}, v13, {WS}, s{sT1} offen sc1", tag="kst")]
e0 = []
for j in range(4): e0 += silu_tile(0, j, False, vXT + 8 * (j % 2))
E0_CH = [7, 8, 9, 10, 11, 12]
for c in range(14):
    g = c // 7; last = (c % 7 == 6)
    slots = [[] for _ in range(12)]
    for ks in range(3):
        rd = (x_reads(c, ks+1) if c < 7 else []) + w_reads(c, ks+1)
        spread(slots, rd, 4*ks, 4*ks+4)
    spread(slots, pend, 0, 12) if pend else None
    pend = []
    if c >= 7: spread(slots, wd_reads(c-7), 1, 11)
    if c in E0_CH:
        k = E0_CH.index(c); n = len(e0)
        part = e0[k*n//len(E0_CH):(k+1)*n//len(E0_CH)]
        tail_part = part[len(part)*3//4:]; spread(slots, part[:len(part)*3//4], 2 if c == 7 else 0, 12)
    else: tail_part = []
    if c == 5: spread(slots, h_build(ACC[1]+16), 0, 12)
    interleave([g1_mfma(c, ks, j) for ks in range(3) for j in range(4)], slots)
    P.wait(("wf", c, 3, 3), *([("wdf", c-7)] if c >= 7 else []))
    if c < 7:
        for i in range(16):
            P(f"v_dot2c_f32_bf16 v{vS+i%2}, s{sONE}, v{vXT+i}"); P(f"v_dot2c_f32_bf16 v{vQ+i%2}, v{vXT+i}, v{vXT+i}")
    for i in range(16): P(f"v_dot2c_f32_bf16 v{vC+i%2}, s{sONE}, v{vF0+i}")
    if last: P.emit(cs_final())
    P.emit(g1_mfma(c, 3, 0))
    if c == 6: P.emit(stats_final())
    needs = []
    if c < 13: needs.append(("w", c+1))
    if last: needs.append("csw")
    if c == 2: needs.append("kst")
    if c == 6: needs += ["stw", "hw"]
    if c == 13: needs += [("hst", 0), "u"]
    P.wait(*needs); P("s_barrier")
    if c in (6, 13) or FINE: P.emit(stamp())
    slots = [[] for _ in range(3)]
    nxt = []
    if last: nxt += cs_reads(g)
    if c < 13: nxt += (x_reads(c+1, 0) if c+1 < 7 else []) + w_reads(c+1, 0)
    P.emit(nxt[:3]); spread(slots, nxt[3:], 0, 3) if nxt[3:] else None
    if tail_part: spread(slots, tail_part, 0, 3)
    interleave([g1_mfma(c, 3, j) for j in (1, 2, 3)], slots)
    if c + 3 < 7: pend += x_loads(c+3)
    if c + 3 < 14: pend += w_loads(c+3)
    if 4 <= c <= 10: pend += wd_loads(c-4)
    if c == 11: pend += wd_loads(7) + wd_loads(8)
    if c == 12: pend += wd_loads(9) + wd_loads(10)
    if c == 13: pend += wd_loads(11) + wd_loads(12)
    if c == 2: pend = [flag_store(1)] + h_loads() + pend
    if c == 4:
        pend += [[I(f"s_sub_u32 s{sT0}, s{sWm0}, s{sPm0}"), I(f"v_add_u32 v{vWdR2}, s{sT0}, v{vWdR}"), I(f"v_add_u32 v{vWdR2+1}, s{sT0}, v{vWdR+1}")]]
    if c == 8: pend = [[I(f"v_cmp_gt_u32 vcc, 32, v{vLane}"), I(f"v_cndmask_b32 v{vFlag}, v{vP2}, v{vP1}, vcc"), poll_issue(vFlag, 1, "p1")],
                      [I(f"v_lshlrev_b32 v{vP1}, 7, v{vP1}"), I(f"v_lshlrev_b32 v{vP2}, 7, v{vP2}")],
                      [I(f"v_add_u32 v{vP1}, {WS_FLAG}, v{vP1}"), I(f"v_add_u32 v{vP2}, {WS_FLAG}, v{vP2}")]] + pend
    if c == 10: pend = [poll_check(vFlag, 1, "p1")] + u_loads() + pend
    if c == 13: pend = [flag_store(2)] + pend
    if last:
        sl = [[] for _ in range(4)]
        if c == 13: spread(sl, pend[:5], 0, 4); pend = pend[5:]
        interleave([ext_mfma(g, j) for j in range(4)], sl)

CACC = 56; CBUF = [128, 192]
def conv_reads(rr):
    b = CBUF[rr % 2]; o = []
    for p in range(8):
        o.append(I(f"ds_read_b128 {q(b+32+4*p)}, v{vCB} offset:{512*p+64*(3-rr)}", tag=("cb", rr, p)))
        for h in (0, 1):
            o.append(I(f"ds_read_b64_tr_b16 {q(b+4*p+2*h,2)}, v{vCA} offset:{64*rr+512*p+8*(1-h)}", tag=("ca", rr, p)))
    return o
for j in range(4): P(f"s_add_u32 s{sHS+j}, s{sHS+j}, 4096")
e1 = []
for j in range(4): e1 += silu_tile(1, j, True, vXT + 8 * (j % 2))
slots = [[] for _ in e1]
n = len(e1)
spread(slots, pend, 0, n//8); pend = []
spread(slots, wd_reads(7) + wd_reads(8) + [W(("wdf", 7))] + wd_loads(13) + wd_reads(9) + wd_reads(10), n//8, n*5//8)
spread(slots, [poll_issue(vP2, 2, "p2a")], n-2, n-1)
spread(slots, conv_reads(0), n*5//8, n-2)
interleave(e1, slots)
P.emit(stamp())

vHL = vXr
def hreg(i):
    i %= 32
    if i < 8: return q(224 + 4*i, 4, 'a')
    if i < 16: return q(vXT + 4*(i-8))
    return q(192 + 4*(i-16))
HORD = [(st, nt) for st in range(28) for nt in (0, 1)]
def h_load(i):
    st, nt = HORD[i]; g, f2 = st // 14, st % 14
    ld = I(f"buffer_load_dwordx4 {hreg(i)}, v{vHL+nt}, {WS}, s{sD0} offen sc1", tag=("h", i))
    return [I(f"s_mov_b32 s{sD0}, {8192*f2+4096*g}"), ld] if nt == 0 else ld
hl_setup = [I(f"s_mul_i32 s{sT0}, s{sRR}, {2*114688}"), I(f"s_lshl_b32 s{sT1}, s{sW}, 10"), I(f"s_add_u32 s{sT0}, s{sT0}, s{sT1}"),
            I(f"s_add_u32 s{sT0}, s{sT0}, {WS_H}"), I(f"v_add_u32 v{vHL}, s{sT0}, v{vL16}"), I(f"v_add_u32 v{vHL+1}, 114688, v{vHL}")]
for rr in range(4):
    b = CBUF[rr % 2]; mf = []
    for qq in range(8):
        for p in range(qq + 1):
            a = CACC + 4*qq
            src = "0" if (rr == 0 and p == 0) else q(a)
            mf.append(I(f"v_mfma_f32_16x16x32_bf16 {q(a)}, {q(b+4*p)}, {q(b+32+4*(qq-p))}, {src}", needs=[("ca", rr, qq)]))
    slots = [[] for _ in mf]
    if rr < 3: spread(slots, conv_reads(rr+1), 0, 34)
    if rr == 0: spread(slots, wd_reads(11) + wd_reads(12) + hl_setup, 2, 36)
    if rr == 1: spread(slots, wd_reads(13) + [poll_check(vP2, 2, "p2a")] + [h_load(i) for i in range(6)], 2, 36)
    if rr == 2: spread(slots, [[W(("hst", 1)), I("s_barrier")] + flag_store(3)] + [h_load(i) for i in range(6, 12)], 0, 36)
    if rr == 3: spread(slots, [h_load(i) for i in range(12, 16)], 0, 24)
    interleave(mf, slots)
P.emit(stamp())
xs = [I(f"v_lshrrev_b32 v4, 4, v{vLane}"), I(f"v_lshl_add_u32 v5, v4, 2, v{vLane}"), I("v_and_b32 v5, 15, v5"), I("v_lshl_add_u32 v5, v4, 4, v5"),
      I(f"s_lshl_b32 s{sT0}, s{sW}, 13"), I(f"v_lshl_add_u32 v8, v5, 4, s{sT0}"),
      I(f"v_and_b32 v4, 3, v{vLane}"), I(f"v_lshrrev_b32 v5, 2, v{vLane}"), I("v_lshl_add_u32 v5, v4, 2, v5"), I("v_and_b32 v5, 15, v5"), I("v_lshl_add_u32 v5, v4, 4, v5"),
      I(f"s_lshl_b32 s{sT0}, s{sW}, 11"), I(f"v_lshl_add_u32 v3, v5, 4, s{sT0}")]
P.emit(xs)
for qq in range(8):
    P(f"ds_write_b128 v8, {q(CACC+4*qq)} offset:{WR+1024*qq}", tag="xw")
    P.emit(h_load(16 + qq))
P(f"s_lshl_b32 s{sT0}, s{sW}, 10"); P(f"s_add_u32 s{sT0}, s{sT0}, {UB+512}"); P(f"v_lshl_add_u32 v7, v{vLane}, 3, s{sT0}")
P(f"s_lshl_b32 s{sT0}, s{sCB}, 5"); P(f"s_add_u32 s{sT0}, s{sT0}, s{sRR}"); P(f"s_lshl_b32 s{sT0}, s{sT0}, 13")
P(f"s_lshl_b32 s{sT1}, s{sW}, 11"); P(f"s_add_u32 s{sT0}, s{sT0}, s{sT1}"); P(f"s_add_u32 s{sT0}, s{sT0}, {WS_Y}")
P(f"s_and_b32 s{sD1}, s{sDD}, 0xffff"); P(f"s_lshl_b32 s{sD2}, s{sDD}, 16"); P(f"s_lshr_b32 s{sD3}, s{sDD}, 16"); P(f"s_and_b32 s{sDD}, s{sDD}, 0xffff0000")
UR = 88
for e in (0, 1):
    for ch in (0, 1): P(f"ds_read_b64 {q(UR+4*e+2*ch,2)}, v7 offset:{4608*ch+512*e}", tag="ur")
P.wait("xw"); P("s_barrier")
for e in (0, 1):
    for w2 in range(4): P(f"ds_read_b128 {q(CACC+16*e+4*w2)}, v3 offset:{WR+8192*w2+1024*e}", tag=("xr", e))
for i in range(24, 28): P.emit(h_load(i))
P.emit(poll_issue(vP2, 3, "p2b"))
for e in (0, 1):
    b = CACC + 16 * e
    P.wait(("xr", e))
    for ch in (0, 1):
        for jj in (0, 2): P(f"v_pk_add_f32 {q(b+8*ch+jj,2)}, {q(b+8*ch+jj,2)}, {q(b+8*ch+4+jj,2)}")
    for ch in (0, 1):
        for jj in range(4):
            sd = [[sD1, sD2], [sD3, sDD]][ch][jj & 1]
            P(f"v_dot2c_f32_bf16 v{b+8*ch+jj}, s{sd}, v{UR+4*e+2*ch+(jj>>1)}")
    for jj in range(4): P(f"v_cvt_pk_bf16_f32 v{b+4+jj}, v{b+jj}, v{b+8+jj}")
    P(f"buffer_store_dwordx4 {q(b+4)}, v{vL16}, {WS}, s{sT0} offen offset:{1024*e} sc1", tag="yst")
P.emit(stamp())

GA = 128
def g2_mfma(i, mt):
    st, nt = HORD[i]; a = GA + 32*nt + 16*mt
    src = "0" if st == 0 else q(a, 16)
    return I(f"v_mfma_f32_32x32x16_bf16 {q(a,16)}, {q(wd_reg(st, mt),4,'a')}, {hreg(i)}, {src}", needs=[("h", i)])
mf = [g2_mfma(i, mt) for i in range(56) for mt in (0, 1)]
slots = [[] for _ in mf]
H1_AT = 12
slots[H1_AT] += poll_check(vP2, 3, "p2b")
for i in range(28, 56):
    s = H1_AT + 1 + 2 * (i - 28)
    assert i < 32 or s > 2 * (i - 32) + 1
    x = h_load(i); slots[s] += x if isinstance(x, list) else [x]
slots[30] += [W("yst"), I("s_barrier")] + flag_store(4)
XR = 56; vFA = 2
fin_setup = [I(f"v_lshrrev_b32 v5, 3, v{vLane}"), I(f"v_and_b32 v6, 7, v{vLane}"),
    I("v_mul_u32_u24 v8, 896, v5"), I("v_lshl_add_u32 v8, v6, 4, v8"),
    I(f"s_lshl_b32 s{sT0}, s{sRR}, 3"), I(f"s_add_u32 s{sT0}, s{sT0}, s{sW}"), I(f"s_mul_i32 s{sT0}, s{sT0}, {8*896}"),
    I(f"s_lshl_b32 s{sT1}, s{sCB}, 7"), I(f"s_add_u32 s{sD2}, s{sT0}, s{sT1}"), I(f"s_add_u32 s{sD3}, s{sD2}, {32*896}"),
    I(f"buffer_load_dwordx4 {q(XR)}, v8, {X}, s{sD2} offen", tag="xt"), I(f"buffer_load_dwordx4 {q(XR+4)}, v8, {X}, s{sD3} offen", tag="xt"),
    I("v_lshlrev_b32 v9, 1, v6"), I("v_xor_b32 v9, v9, v5"), I("v_lshlrev_b32 v9, 4, v9"), I("v_lshl_add_u32 v9, v5, 8, v9"),
    I(f"s_lshl_b32 s{sT0}, s{sW}, 11"), I(f"v_add_u32 v9, s{sT0}, v9"), I("v_xor_b32 v10, 16, v9"),
    I(f"v_lshrrev_b32 v11, 5, v{vLane}"), I(f"s_lshl_b32 s{sT0}, s{sW}, 1"), I(f"v_add_u32 v11, s{sT0}, v11"), I("v_xor_b32 v11, v11, v6"),
    I("v_lshlrev_b32 v11, 4, v11"), I("v_lshl_add_u32 v11, v6, 10, v11"), I("v_and_b32 v4, 3, v5"), I("v_lshl_add_u32 v11, v4, 2, v11"), I(f"v_add_u32 v11, {YT}, v11"),
    I(f"s_and_b32 s{sT0}, s{sRR}, 1"), I(f"s_lshl_b32 s{sT0}, s{sT0}, 3"), I(f"s_add_u32 s{sT0}, s{sT0}, s{sW}"), I(f"s_lshl_b32 s{sT0}, s{sT0}, 6"),
    I(f"s_add_u32 s{sT0}, s{sT0}, {ST}"), I(f"v_lshl_add_u32 v12, v5, 3, s{sT0}"),
    I(f"v_lshrrev_b32 v4, 5, v{vLane}"), I("v_xor_b32 v4, v4, v6"), I("v_lshlrev_b32 v4, 4, v4"), I(f"v_and_b32 v13, 31, v{vLane}"),
    I("v_lshl_add_u32 v4, v13, 8, v4"), I(f"s_lshl_b32 s{sT0}, s{sW}, 13"), I(f"v_add_u32 v{vWA}, s{sT0}, v4"),
    I(f"v_xor_b32 v{vWA+1}, 32, v{vWA}"), I(f"v_xor_b32 v{vWA+2}, 64, v{vWA}"), I(f"v_xor_b32 v{vWA+3}, 96, v{vWA}"),
    I(f"v_and_b32 v13, 15, v{vLane}"), I(f"s_lshl_b32 s{sT0}, s{sW}, 1"), I(f"v_xor_b32 v13, s{sT0}, v13"), I("v_lshlrev_b32 v13, 4, v13"),
    I(f"v_lshrrev_b32 v3, 4, v{vLane}"), I("v_lshl_add_u32 v3, v3, 13, v13"), I("v_xor_b32 v4, 16, v3"), I(f"v_add_u32 v4, {32768-1024}, v4"),
    I(f"s_lshl_b32 s{sT0}, s{sCB}, 2"), I(f"s_add_u32 s{sT0}, s{sT0}, s{sW}"), I(f"s_lshl_b32 s{sT0}, s{sT0}, 16"),
    I(f"s_lshl_b32 s{sT1}, s{sRR}, 8"), I(f"s_add_u32 s{sT0}, s{sT0}, s{sT1}"), I(f"s_add_u32 s{sD1}, s{sT0}, {WS_Y}"),
    I(f"s_lshl_b32 s{sT1}, s{sW}, 11"), I(f"s_add_u32 m0, s{sT1}, {YT}")]
spread(slots, fin_setup, 32, 68)
slots[70] += [poll_issue(vP1, 4, "p3")]
slots[96] += poll_check(vP1, 4, "p3") + [I(f"buffer_load_dwordx4 v3, {WS}, s{sD1} offen sc1 lds", tag="yt"),
                                        I(f"buffer_load_dwordx4 v4, {WS}, s{sD1} offen offset:1024 sc1 lds", tag="yt")]
interleave(mf, slots)
P.emit(stamp())
for nt in (0, 1):
    for mt in (0, 1):
        for i in range(4): P(f"ds_write_b128 v{vWA+i}, {q(GA+32*nt+16*mt+4*i)} offset:{32768*nt+128*mt}", tag="rw")
P.wait("rw", "yt", "xt"); P("s_barrier")
RB = [128, 192]; YR = 64; SR = 72
for nt in (0, 1):
    for jj in range(4): P(f"ds_read_b32 v{YR+4*nt+jj}, v11 offset:{256*jj+128*nt}", tag=("yr", nt))
    P(f"ds_read_b64 {q(SR+2*nt,2)}, v12 offset:{256*nt}", tag=("yr", nt))
    for w2 in range(4):
        for e in (0, 1): P(f"ds_read_b128 {q(RB[nt]+8*w2+4*e)}, v{9+e} offset:{32768*nt+8192*w2}", tag=("rr", nt))
    b = RB[nt]; xf = b + 32; yf = b + 40; t = b + 48
    for d in range(4):
        P(f"v_lshlrev_b32 v{xf+2*d}, 16, v{XR+4*nt+d}"); P(f"v_and_b32 v{xf+2*d+1}, 0xffff0000, v{XR+4*nt+d}")
    P.wait(("yr", nt))
    for d in range(4):
        P(f"v_lshlrev_b32 v{yf+2*d}, 16, v{YR+4*nt+d}"); P(f"v_and_b32 v{yf+2*d+1}, 0xffff0000, v{YR+4*nt+d}")
    for d in range(8): P(f"v_fma_f32 v{t+d}, v{xf+d}, v{SR+2*nt}, v{SR+2*nt+1}")
    for d in range(0, 8, 2): P(f"v_pk_mul_f32 {q(yf+d,2)}, {q(yf+d,2)}, {q(t+d,2)}")
for nt in (0, 1):
    b = RB[nt]; xf = b + 32; yf = b + 40; t = b + 48
    P.wait(("rr", nt))
    for d in range(0, 8, 2): P(f"v_pk_add_f32 {q(b+d,2)}, {q(b+d,2)}, {q(b+8+d,2)}"); P(f"v_pk_add_f32 {q(b+16+d,2)}, {q(b+16+d,2)}, {q(b+24+d,2)}")
    for d in range(0, 8, 2): P(f"v_pk_add_f32 {q(b+d,2)}, {q(b+d,2)}, {q(b+16+d,2)}")
    for d in range(8): P(f"v_mul_f32 v{t+d}, 0xbfb8aa3b, v{b+d}")
    for d in range(8): P(f"v_exp_f32 v{t+d}, v{t+d}")
    for d in range(0, 8, 2): P(f"v_pk_mul_f32 {q(yf+d,2)}, {q(yf+d,2)}, {q(b+d,2)}")
    for d in range(8): P(f"v_add_f32 v{t+d}, 1.0, v{t+d}")
    for d in range(8): P(f"v_rcp_f32 v{t+d}, v{t+d}")
    for d in range(0, 8, 2): P(f"v_pk_fma_f32 {q(xf+d,2)}, {q(yf+d,2)}, {q(t+d,2)}, {q(xf+d,2)}")
    for d in range(4): P(f"v_cvt_pk_bf16_f32 v{b+d}, v{xf+2*d}, v{xf+2*d+1}")
    P(f"buffer_store_dwordx4 {q(b)}, v8, {OUT}, s{[sD2, sD3][nt]} offen", tag="ost")
if STAMP:
    P.wait_all(); P.emit(stamp())
    P("s_memrealtime s[16:17]", tag="stp"); P("v_mov_b32 v14, s16", needs=["stp"]); P(f"buffer_store_dword v14, v15, {WS}, s{sSTP} offen offset:252", tag="stpst")
P("Lend:"); P("s_endpgm")

ins, added = pad_hazards(P.out)
for i in ins: i.t = i.t.replace("NLINES", "200")
tmp = ins + [I(l) for s in slow for l in s.splitlines()]
total, mis = align8(tmp)
nl = min(255, (total - 64) // 128)
assert nl > 64
body = "\n".join(("" if i.t.endswith(":") else "    ") + i.t.replace("v_min_u32 v2, 200", f"v_min_u32 v2, {nl}") for i in tmp)
hdr = open(f"cdna_kernels/{NAME}.s.ref").read().split("; Override launch")[0]
txt = hdr + f"""; @launch grid=({NWG},1,1) block=(256,1,1) lds={LDS_SIZE}
; generated by gen/gen.py (hand-written schedule): one persistent launch, 224 workgroups
;   kv = shiftconv(k)*v -> GEMM1 (gate/up, LayerNorm folded in) -> Toeplitz-MFMA long conv -> GEMM2 + output gate
.amdgcn_target "amdgcn-amd-amdhsa--gfx950"
.text
.globl {NAME}_kernel
.p2align 8
.type {NAME}_kernel,@function
{NAME}_kernel:
{body}
.section .rodata,"a"
.p2align 6
.amdhsa_kernel {NAME}_kernel
  .amdhsa_next_free_vgpr 512
  .amdhsa_next_free_sgpr 102
  .amdhsa_accum_offset 256
  .amdhsa_group_segment_fixed_size 0
  .amdhsa_kernarg_size 104
  .amdhsa_user_sgpr_count 2
  .amdhsa_user_sgpr_kernarg_segment_ptr 1
  .amdhsa_system_sgpr_workgroup_id_x 1
  .amdhsa_float_denorm_mode_32 3
.end_amdhsa_kernel
"""
open(OUTP, "w").write(txt)
print(f"{OUTP}: {len(tmp)} lines, {total} bytes, nop states added {added}, misaligned 8B {mis}")
```

```python
import sys, os
sys.path.insert(0, os.path.dirname(os.path.abspath(__file__)))
from asmlib import *

NAME = "recurrent_scan__ssm_conv_h3__swiglu_ffn__prompt"
STAMP = "--stamp" in sys.argv
FINE = "--fine" in sys.argv
HOLD = [a[7:] for a in sys.argv if a.startswith("--hold=")]
HOLD = tuple(int(x) for x in HOLD[0].split(":")) if HOLD else None
OUTP = [a for a in sys.argv[1:] if not a.startswith("--")]
OUTP = OUTP[0] if OUTP else f"cdna_kernels/{NAME}.s"

NWG = 224
WS_KVT = 0; WS_Y = 2 << 20; WS_H = 4 << 20; WS_FLAG = 11 << 20; WS_STAMP = 12 << 20; WS_SIZE = 16 << 20
WR = 0; PS = 49152; HC = 98304; UB = 131584; ST = 140800; CS = 142336; YT = 143360; LDS_SIZE = 151552
KV = HC; TB = HC + 20480
assert CS % 1024 == 0
sW, sR_, sCB, sRR, sF = 3, 4, 5, 6, 7
sXO = 8
sT0, sT1, sT2 = 15, 42, 43
X, K, V, SH, SK, WG, WU, WD, OUT, DBG, WS = (f"s[{b}:{b+3}]" for b in range(44, 88, 4))
sWm0, sPm0, sONE, sD0, sD1, sD2, sD3 = 88, 89, 90, 91, 92, 93, 94
sHS = 96
sSPIN = 95; sDD = 100; sSTP = 101
vLane = 1
vWA = 16; vWg = 20; vWu = 22; vXd = 24; vXr = 28; vL16 = 32; vWdD = 33; vWdR = 35
vFlag = 37; vP1 = 38; vP2 = 39; vPoll = 40; vS = 41; vQ = 43; vC = 45; vC1 = 47; vC2 = 48
vCA = 49; vCB = 50; vCS = 51; vBX = 52
vFlagW = 0
vF0 = 56
vF1 = 72
vXT = 96; vAX = 112; ACC = [128, 192]
def q(b, n=4, k="v"): return f"{k}[{b}:{b+n-1}]"
def wfrag(ks, j): return vF0 + 4 * (ks % 4) if j == 0 else vF1 + 12 * (ks % 2) + 4 * (j - 1)

P = Prog()
slow = []
nstamp = [0]
def stamp():
    if HOLD:
        n = nstamp[0]; nstamp[0] += 1
        if n != HOLD[0]: return []
        return [I("Lhold:"), I("s_memrealtime s[16:17]", tag="stp"), I(f"s_sub_u32 s16, s16, s{sSTP}", needs=["stp"]),
                I(f"s_cmp_lt_u32 s16, {HOLD[1]}"), I("s_cbranch_scc1 Lhold")]
    if not STAMP: return []
    n = nstamp[0]; nstamp[0] += 1
    return [I(f"s_memtime s[16:17]", tag="stp"), I(f"v_mov_b32 v14, s16", needs=["stp"]),
            I(f"buffer_store_dword v14, v15, {WS}, s{sSTP} offen offset:{4*n}", tag="stpst")]

def srd(name, lo, size):
    b = int(name[2:name.index(":")])
    return [f"s_mov_b32 s{b}, s{lo}", f"s_and_b32 s{b+1}, s{lo+1}, 0xffff", f"s_mov_b32 s{b+2}, {size}", f"s_mov_b32 s{b+3}, 0x20000"]

def interleave(mf, fillers):
    for m, fl in zip(mf, fillers):
        P.emit(m); P.emit(fl)

def spread(slots, items, lo=0, hi=None):
    hi = len(slots) if hi is None else hi
    n = hi - lo
    for k, it in enumerate(items):
        s = lo + (k * n) // len(items)
        slots[s].extend(it if isinstance(it, list) else [it])

def poll_ld(voff, stage):
    if stage == 1: return f"buffer_load_ubyte v{vPoll}, v{voff}, {DBG}, 0 offen sc1"
    return f"buffer_load_dword v{vPoll}, v{voff}, {WS}, 0 offen sc1"
def poll_issue(voff, stage, tag): return I(poll_ld(voff, stage), tag=tag)
def poll_check(voff, stage, tag):
    n = len(slow)
    slow.append(f"""Lslow{n}:
    s_mov_b32 s{sSPIN}, 0
Lspin{n}:
    s_sleep {8 if stage == 1 else 1}
    {poll_ld(voff, stage)}
    s_add_u32 s{sSPIN}, s{sSPIN}, 1
    s_waitcnt vmcnt(0)
    v_cmp_gt_u32 vcc, {stage}, v{vPoll}
    s_cmp_gt_u32 s{sSPIN}, 0x40000
    s_cbranch_scc1 Lback{n}
    s_cbranch_vccnz Lspin{n}
    s_branch Lback{n}""")
    return [I(f"v_cmp_gt_u32 vcc, {stage}, v{vPoll}", needs=[tag]), I("s_nop 0"), I(f"s_cbranch_vccnz Lslow{n}"), I(f"Lback{n}:")]
def flag_store(stage):
    if stage == 1: return [I(f"v_mov_b32 v2, 1"), I(f"buffer_store_byte v2, v{vFlag}, {DBG}, 0 offen sc1", tag="flag1")]
    return [I(f"v_mov_b32 v2, {stage}"), I(f"buffer_store_dword v2, v{vFlagW}, {WS}, 0 offen sc1", tag=f"flag{stage}")]

P("s_cmp_ge_u32 s2, %d" % NWG); P("s_cbranch_scc1 Lend")
if HOLD: P("s_memrealtime s[98:99]", tag="ka")
P("s_load_dwordx16 s[16:31], s[0:1], 0", tag="ka"); P("s_load_dwordx8 s[32:39], s[0:1], 64", tag="ka"); P("s_load_dwordx2 s[40:41], s[0:1], 96", tag="ka")
P("s_getpc_b64 s[42:43]")
P("v_min_u32 v2, NLINES, v0"); P("v_lshlrev_b32 v2, 7, v2"); P("v_mov_b32 v3, s43")
P("v_add_co_u32 v2, vcc, s42, v2"); P("v_addc_co_u32 v3, vcc, 0, v3, vcc")
P("global_load_dword v250, v[2:3], off", tag="pf")
P(f"v_and_b32 v{vLane}, 63, v0"); P("v_lshrrev_b32 v5, 6, v0"); P(f"v_readfirstlane_b32 s{sW}, v5")
P("s_and_b32 s8, s2, 7"); P("s_lshr_b32 s9, s2, 3")
P("s_mul_i32 s10, s9, 37"); P("s_lshr_b32 s10, s10, 8")
P("s_mul_i32 s11, s10, 7"); P(f"s_sub_u32 s{sCB}, s9, s11")
P("s_lshr_b32 s11, s8, 1"); P("s_and_b32 s12, s8, 1")
P(f"s_lshl_b32 s{sR_}, s11, 2"); P(f"s_add_u32 s{sR_}, s{sR_}, s10")
P(f"s_lshl_b32 s{sRR}, s{sR_}, 1"); P(f"s_add_u32 s{sRR}, s{sRR}, s12")
P(f"s_mul_i32 s{sF}, s12, 7"); P(f"s_add_u32 s{sF}, s{sF}, s{sCB}")
P("s_lshl_b32 s10, s10, 1"); P(f"s_add_u32 s10, s10, s{sCB}"); P("s_add_u32 s10, s10, s11")
P("s_mul_i32 s9, s10, 37"); P("s_lshr_b32 s9, s9, 8"); P("s_mul_i32 s9, s9, 7"); P("s_sub_u32 s10, s10, s9")
P("s_lshl_b32 s8, s10, 7")
for c in range(1, 7):
    P(f"s_add_u32 s{sXO+c}, s{sXO+c-1}, 128"); P(f"s_cmp_eq_u32 s{sXO+c}, 896"); P(f"s_cselect_b32 s{sXO+c}, 0, s{sXO+c}")
P(f"s_lshl_b32 s{sWm0}, s{sW}, 12"); P(f"s_mul_i32 s{sPm0}, s{sW}, 12288"); P(f"s_add_u32 s{sPm0}, s{sPm0}, {PS}")
P(f"s_mov_b32 s{sONE}, 0x3f803f80")
P(f"v_lshrrev_b32 v5, 3, v{vLane}"); P(f"v_and_b32 v6, 7, v{vLane}"); P(f"v_bfe_u32 v7, v{vLane}, 4, 1")
P(f"v_lshlrev_b32 v{vL16}, 4, v{vLane}")
P("v_lshlrev_b32 v8, 2, v7"); P("v_xor_b32 v8, v8, v6"); P("v_lshlrev_b32 v8, 4, v8")
P("v_mul_u32_u24 v9, 896, v5"); P("v_add_u32 v8, v8, v9")
P(f"s_lshl_b32 s{sT0}, s{sCB}, 7"); P(f"s_mul_i32 s{sT1}, s{sW}, {16*896}"); P(f"s_add_u32 s{sT0}, s{sT0}, s{sT1}")
P(f"v_add_u32 v{vWdD}, s{sT0}, v8"); P(f"v_add_u32 v{vWdD+1}, {8*896-1024}, v{vWdD}")
P(f"s_mul_i32 s{sT1}, s{sRR}, {64*896}")
P(f"v_add_u32 v10, s{sT1}, v{vWdD}")
P(f"v_add_u32 v11, {8*896-1024}, v10"); P(f"v_subrev_u32 v12, {8*896}, v10")
P.wait("ka")
if HOLD: P(f"s_mov_b32 s{sSTP}, s98")
P.emit(srd(K, 18, 1835008)); P.emit(srd(V, 20, 1835008))
P(f"s_mul_i32 s{sT2}, s{sW}, 5120"); P(f"s_add_u32 s{sT2}, s{sT2}, {KV}")
P(f"s_mov_b32 m0, s{sT2}"); P(f"buffer_load_dwordx4 v12, {K}, 0 offen lds", tag="kv")
P(f"s_add_u32 m0, s{sT2}, 1024"); P(f"buffer_load_dwordx4 v10, {K}, 0 offen lds", tag="kv"); P(f"buffer_load_dwordx4 v11, {K}, 0 offen offset:1024 lds", tag="kv")
P(f"s_add_u32 m0, s{sT2}, 3072"); P(f"buffer_load_dwordx4 v10, {V}, 0 offen lds", tag="kv"); P(f"buffer_load_dwordx4 v11, {V}, 0 offen offset:1024 lds", tag="kv")
P.emit(srd(SH, 22, 3584))
P(f"s_lshl_b32 s{sT0}, s{sCB}, 9"); P(f"v_lshlrev_b32 v9, 3, v{vLane}")
P(f"buffer_load_dwordx2 v[128:129], v9, {SH}, s{sT0} offen", tag="kv")
P.emit(srd(X, 16, 1835008)); P.emit(srd(WG, 30, 1605632)); P.emit(srd(WU, 32, 1605632))
P(f"s_lshl_b32 s{sT0}, s{sR_}, 2"); P(f"s_add_u32 s{sT0}, s{sT0}, s{sW}"); P(f"s_mul_i32 s{sT0}, s{sT0}, {32*896}")
P(f"v_lshrrev_b32 v9, 4, v{vLane}"); P("v_xor_b32 v9, v9, v6"); P("v_lshlrev_b32 v9, 4, v9")
P("v_mul_u32_u24 v13, 896, v5"); P(f"v_add_u32 v13, s{sT0}, v13")
P(f"v_add_u32 v{vXd}, v13, v9"); P("v_xor_b32 v9, 64, v9"); P("v_add_u32 v9, v13, v9")
P(f"v_add_u32 v{vXd+1}, {8*896-1024}, v9"); P(f"v_add_u32 v{vXd+2}, {16*896-2048}, v{vXd}"); P(f"v_add_u32 v{vXd+3}, {24*896-3072}, v9")
P(f"s_mul_i32 s{sT0}, s{sW}, {16*3584}"); P(f"s_lshl_b32 s{sT1}, s{sF}, 8"); P(f"s_add_u32 s{sT0}, s{sT0}, s{sT1}")
P("v_mul_u32_u24 v13, 3584, v5"); P(f"v_add_u32 v13, s{sT0}, v13")
P("v_lshlrev_b32 v9, 1, v7"); P("v_xor_b32 v9, v9, v6"); P("v_lshlrev_b32 v9, 4, v9")
P(f"v_add_u32 v{vWg}, v13, v9"); P("v_xor_b32 v9, 64, v9"); P(f"v_add_u32 v{vWu}, v13, v9")
P(f"v_add_u32 v{vWg+1}, {8*3584-1024}, v{vWg}"); P(f"v_add_u32 v{vWu+1}, {8*3584-1024}, v{vWu}")

def x_loads(c):
    s = c % 3
    return [[I(f"s_add_u32 m0, s{sPm0}, {4096*s}"), I(f"buffer_load_dwordx4 v{vXd}, {X}, s{sXO+c} offen lds", tag=("x", c))]] + \
           [I(f"buffer_load_dwordx4 v{vXd+i}, {X}, s{sXO+c} offen offset:{1024*i} lds", tag=("x", c)) for i in (1, 2, 3)]
def w_loads(c):
    s = c % 3; pre = []
    if c == 7: pre = [I(f"v_add_u32 v{r}, 128, v{r}") for r in (vWg, vWg+1, vWu, vWu+1)]
    return [pre + [I(f"s_mul_i32 s{sD0}, s{sXO+c%7}, 1792"), I(f"s_add_u32 m0, s{sWm0}, {WR+16384*s}"),
             I(f"buffer_load_dwordx4 v{vWg}, {WG}, s{sD0} offen lds", tag=("w", c))],
            I(f"buffer_load_dwordx4 v{vWg+1}, {WG}, s{sD0} offen offset:1024 lds", tag=("w", c)),
            [I(f"s_add_u32 m0, s{sWm0}, {WR+16384*s+2048}"), I(f"buffer_load_dwordx4 v{vWu}, {WU}, s{sD0} offen lds", tag=("w", c))],
            I(f"buffer_load_dwordx4 v{vWu+1}, {WU}, s{sD0} offen offset:1024 lds", tag=("w", c))]
P.emit(x_loads(0)); P.emit(w_loads(0)); P.emit(x_loads(1))
P.emit(srd(SK, 24, 1835008)); P.emit(srd(WD, 34, 1605632)); P.emit(srd(OUT, 36, 1835008)); P.emit(srd(DBG, 38, 256)); P.emit(srd(WS, 40, WS_SIZE))
P(f"s_lshl_b32 s{sT0}, s{sCB}, 5"); P(f"s_add_u32 s{sT0}, s{sT0}, s{sRR}")
P(f"s_lshl_b32 s{sT1}, s{sT0}, 2"); P(f"s_load_dword s{sDD}, s[26:27], s{sT1}", tag="dd")
P(f"v_mov_b32 v9, s{sT0}"); P("v_mov_b32 v13, 0x100000"); P("v_cmp_eq_u32 vcc, 0, v0"); P(f"v_cndmask_b32 v{vFlag}, v13, v9, vcc")
P(f"v_lshlrev_b32 v{vFlagW}, 7, v{vFlag}"); P(f"v_add_u32 v{vFlagW}, {WS_FLAG}, v{vFlagW}"); P("v_mov_b32 v13, 0")
P(f"buffer_store_dword v13, v{vFlagW}, {WS}, 0 offen sc1", tag="kst")
P(f"s_lshl_b32 s{sT1}, s{sCB}, 5"); P(f"v_and_b32 v9, 31, v{vLane}"); P(f"v_add_u32 v{vP1}, s{sT1}, v9")
P(f"v_min_u32 v9, 13, v9"); P("v_lshrrev_b32 v13, 1, v9"); P("v_lshlrev_b32 v13, 5, v13"); P("v_and_b32 v9, 1, v9")
P(f"s_lshl_b32 s{sT1}, s{sR_}, 1"); P(f"v_add3_u32 v{vP2}, v13, v9, s{sT1}")
if STAMP:
    P(f"s_lshl_b32 s{sSTP}, s2, 2"); P(f"s_add_u32 s{sSTP}, s{sSTP}, s{sW}"); P(f"s_lshl_b32 s{sSTP}, s{sSTP}, 8"); P(f"s_add_u32 s{sSTP}, s{sSTP}, {WS_STAMP}")
    P("v_mov_b32 v13, 0x40000000"); P(f"v_cmp_eq_u32 vcc, 0, v{vLane}"); P("v_cndmask_b32 v15, v13, 0, vcc")
    P("s_memrealtime s[16:17]", tag="stp"); P("v_mov_b32 v14, s16", needs=["stp"]); P(f"buffer_store_dword v14, v15, {WS}, s{sSTP} offen offset:248", tag="stpst")
P.emit(stamp())
P(f"v_and_b32 v2, 3, v{vLane}"); P(f"v_bfe_u32 v3, v{vLane}, 2, 2"); P(f"v_bfe_u32 v4, v{vLane}, 4, 1"); P(f"v_lshrrev_b32 v9, 5, v{vLane}")
P("v_lshlrev_b32 v10, 3, v2"); P("v_lshl_add_u32 v10, v3, 7, v10")
P("v_lshrrev_b32 v11, 1, v3")
P("v_lshl_add_u32 v12, v4, 11, v10"); P("v_lshl_add_u32 v12, v9, 10, v12")
P("v_lshl_add_u32 v13, v4, 1, v11"); P(f"v_xor_b32 v13, s{sW}, v13")
P(f"v_lshl_add_u32 v{vWA}, v13, 5, v12")
for j in (1, 2, 3): P(f"v_xor_b32 v{vWA+j}, {32*j}, v{vWA}")
P("v_lshl_add_u32 v12, v9, 9, v10"); P("v_lshl_add_u32 v13, v11, 1, v4"); P("v_lshl_add_u32 v12, v13, 5, v12")
P(f"v_add_u32 v{vWdR}, s{sPm0}, v12"); P(f"v_xor_b32 v{vWdR+1}, 64, v{vWdR}")
P(f"v_lshrrev_b32 v12, 4, v{vLane}"); P("v_lshlrev_b32 v13, 1, v11"); P("v_xor_b32 v13, v13, v12"); P("v_lshl_add_u32 v130, v13, 5, v10")
P(f"v_add_u32 v130, s{sT2}, v130")
P(f"s_lshr_b32 s{sT0}, s{sW}, 1"); P(f"s_and_b32 s{sT1}, s{sW}, 1"); P(f"s_lshl_b32 s{sT1}, s{sT1}, 8")
P(f"s_mul_i32 s{sD0}, s{sT0}, 16640"); P(f"s_add_u32 s{sD0}, s{sD0}, s{sT1}"); P(f"s_add_u32 s{sD0}, s{sD0}, {HC+56}")
P(f"s_mul_i32 s{sD1}, s{sT0}, 4608"); P(f"s_sub_u32 s{sD1}, s{sD1}, s{sT1}"); P(f"s_add_u32 s{sD1}, s{sD1}, {UB+288}")
P("v_mul_u32_u24 v13, 4160, v3"); P("v_lshl_add_u32 v13, v2, 3, v13"); P("v_lshlrev_b32 v12, 4, v12"); P("v_sub_u32 v13, v13, v12"); P(f"v_add_u32 v{vCA}, s{sD0}, v13")
P(f"v_and_b32 v13, 15, v{vLane}"); P("v_lshl_add_u32 v13, v13, 5, v12"); P(f"v_add_u32 v{vCB}, s{sD1}, v13")
P(f"v_and_b32 v12, 31, v{vLane}"); P(f"v_bfe_u32 v13, v{vLane}, 1, 3"); P("v_xor_b32 v13, v13, v9"); P("v_lshlrev_b32 v13, 4, v13")
P("v_lshl_add_u32 v13, v12, 7, v13"); P(f"v_add_u32 v{vXr}, s{sPm0}, v13")
for j in (1, 2, 3): P(f"v_xor_b32 v{vXr+j}, {32*j}, v{vXr}")
P(f"s_lshl_b32 s{sT0}, s{sW}, 8"); P(f"s_add_u32 s{sT0}, s{sT0}, {CS}"); P(f"v_lshl_add_u32 v{vCS}, v{vLane}, 2, s{sT0}")
P(f"s_lshl_b32 s{sT0}, s{sR_}, 2"); P(f"s_add_u32 s{sT0}, s{sT0}, s{sW}"); P(f"s_mul_i32 s{sT0}, s{sT0}, 114688")
P(f"s_lshl_b32 s{sT1}, s{sF}, 13"); P(f"s_add_u32 s{sT0}, s{sT0}, s{sT1}"); P(f"s_add_u32 s{sT0}, s{sT0}, {WS_H}")
for j in range(4):
    P(f"s_xor_b32 s{sT1}, s{sW}, {j}"); P(f"s_lshl_b32 s{sT1}, s{sT1}, 10"); P(f"s_add_u32 s{sHS+j}, s{sT0}, s{sT1}")
for r in list(range(vS, vS+6)) + list(range(vBX, vBX+4)) + list(range(vAX, vAX+16)): P(f"v_mov_b32 v{r}, 0")
P(f"v_mul_u32_u24 v13, 4608, v9"); P(f"v_lshl_add_u32 v13, v12, 4, v13"); P(f"v_add_u32 v13, {UB}, v13")
P(f"ds_write_b128 v13, {q(vAX)}", tag="z")
P.emit(w_loads(1))

KD = 132; VD = 142; KO = 150; TMP = 160
for b in range(5): P(f"ds_read_b64_tr_b16 {q(KD+2*b,2)}, v130 offset:{512*(b+1)}", needs=["kv"], tag="kd")
for b in range(4): P(f"ds_read_b64_tr_b16 {q(VD+2*b,2)}, v130 offset:{3072+512*b}", tag="vd")
P.emit(x_loads(2)); P.emit(w_loads(2))
Wa, Wb, Wc, Wd_, We = 2, 3, 4, 10, 11
P(f"v_alignbit_b32 v{Wa}, v129, v129, 16"); P(f"v_alignbit_b32 v{Wb}, v128, v128, 16")
P(f"v_and_b32 v{Wc}, 0xffff0000, v129"); P(f"v_and_b32 v{We}, 0xffff, v128")
P(f"v_and_b32 v12, 0xffff, v129"); P(f"v_and_b32 v13, 0xffff0000, v128"); P(f"v_or_b32 v{Wd_}, v12, v13")
P.wait("vd")
for d in range(8): P(f"v_dot2_f32_bf16 v{TMP+2*d}, v{KD+d}, v{Wc}, 0"); P(f"v_dot2_f32_bf16 v{TMP+2*d+1}, v{KD+d+1}, v{Wa}, 0")
for d in range(8): P(f"v_dot2_f32_bf16 v{TMP+2*d}, v{KD+d+1}, v{Wd_}, v{TMP+2*d}"); P(f"v_dot2_f32_bf16 v{TMP+2*d+1}, v{KD+d+2}, v{Wb}, v{TMP+2*d+1}")
for d in range(8): P(f"v_dot2_f32_bf16 v{TMP+2*d}, v{KD+d+2}, v{We}, v{TMP+2*d}")
for d in range(8): P(f"v_lshlrev_b32 v{TMP+16+2*d}, 16, v{VD+d}"); P(f"v_and_b32 v{TMP+17+2*d}, 0xffff0000, v{VD+d}")
for d in range(8): P(f"v_pk_mul_f32 {q(TMP+2*d,2)}, {q(TMP+2*d,2)}, {q(TMP+16+2*d,2)}")
for d in range(8): P(f"v_cvt_pk_bf16_f32 v{KD+d}, v{TMP+2*d}, v{TMP+2*d+1}")
P(f"s_lshl_b32 s{sT0}, s{sW}, 1"); P(f"v_xor_b32 v12, s{sT0}, v6"); P("v_lshlrev_b32 v12, 4, v12"); P(f"v_lshl_add_u32 v12, v{vLane}, 7, v12")
P(f"v_add_u32 v12, {TB}, v12"); P("v_xor_b32 v13, 16, v12")
P(f"ds_write_b128 v12, {q(KD)}", tag="tw"); P(f"ds_write_b128 v13, {q(KD+4)}", tag="tw")
P("v_xor_b32 v12, v5, v6"); P("v_lshlrev_b32 v12, 4, v12"); P("v_lshl_add_u32 v12, v5, 7, v12")
P(f"s_lshl_b32 s{sT0}, s{sW}, 11"); P(f"s_add_u32 s{sT0}, s{sT0}, {TB}"); P(f"v_add_u32 v12, s{sT0}, v12")
P("v_lshlrev_b32 v13, 4, v6"); P("v_lshl_add_u32 v13, v5, 12, v13")
P(f"s_lshl_b32 s{sT0}, s{sCB}, 2"); P(f"s_add_u32 s{sT0}, s{sT0}, s{sW}"); P(f"s_lshl_b32 s{sT0}, s{sT0}, 16")
P(f"s_lshl_b32 s{sT1}, s{sRR}, 7"); P(f"s_add_u32 s{sT0}, s{sT0}, s{sT1}"); P(f"s_add_u32 s{sT1}, s{sT0}, 32768")
P.wait("tw", ("w", 0), "dd"); P("s_barrier")
P.emit(stamp())

def w_reads(c, ks, js=(0, 1, 2, 3)):
    o = []
    for j in js:
        for h in (0, 1):
            o.append(I(f"ds_read_b64_tr_b16 {q(wfrag(ks, j)+2*h, 2)}, v{vWA+j} offset:{WR+16384*(c%3)+4096*ks+512*h}", tag=("wf", c, ks, j)))
    return o
def x_reads(c, ks):
    off = 4096 * (c % 3)
    return [I(f"ds_read_b128 {q(16*c+4*ks, 4, 'a')}, v{vXr+ks} offset:{off}", tag=("xf", c, ks)),
            I(f"ds_read_b128 {q(vXT+4*ks)}, v{vXr+ks} offset:{off}", tag=("xt", c, ks))]
def g1_mfma(c, ks, j):
    a = ACC[c // 7] + 16 * j; cc = c % 7
    src = "0" if (cc == 0 and ks == 0) else q(a, 16)
    needs = [("wf", c, ks, j | 1)] + ([("xf", c, ks)] if c < 7 else [])
    return I(f"v_mfma_f32_32x32x16_bf16 {q(a,16)}, {q(wfrag(ks,j))}, {q(16*cc+4*ks,4,'a')}, {src}", needs=needs)
def wd_where(u):
    if u in (8, 10, 12): return ("wr", {8: 11, 10: 12, 12: 13}[u] % 3)
    return ("ps", {0:1,1:2,2:0,3:1,4:2,5:0,6:1,7:2,9:0,11:1,13:2}[u])
def wd_loads(u):
    kind, s = wd_where(u); o = []
    for k in (0, 1):
        st = 2 * u + k; g, f2 = st // 14, st % 14
        m0 = f"s_add_u32 m0, s{sPm0}, {4096*s+2048*k}" if kind == "ps" else f"s_add_u32 m0, s{sWm0}, {WR+16384*s+2048*k}"
        o.append([I(f"s_mov_b32 s{sD1}, {(128*f2+64*g)*896}"), I(m0), I(f"buffer_load_dwordx4 v{vWdD}, {WD}, s{sD1} offen lds", tag=("wd", u))])
        o.append(I(f"buffer_load_dwordx4 v{vWdD+1}, {WD}, s{sD1} offen offset:1024 lds", tag=("wd", u)))
    return o
def wd_reg(st, mt): return (112 + 8 * st if st < 14 else 8 * (st - 14)) + 4 * mt
vWdR2 = vXd
def wd_reads(u):
    kind, s = wd_where(u); o = []
    for k in (0, 1):
        for mt in (0, 1):
            for h in (0, 1):
                ar, off = (vWdR, 4096 * s) if kind == "ps" else (vWdR2, 16384 * s)
                o.append(I(f"ds_read_b64_tr_b16 {q(wd_reg(2*u+k, mt)+2*h, 2, 'a')}, v{ar+mt} offset:{off+2048*k+1024*h}", needs=[("wd", u)], tag=("wdf", u)))
    return o
def silu_tile(g, j, packed, T):
    a = ACC[g] + 16 * j; o = []
    for p in range(4):
        g0, g1, u0, u1 = a+2*p, a+2*p+1, a+8+2*p, a+9+2*p
        t0, t1 = T + 4 + 2*(p % 2), T + 5 + 2*(p % 2)
        if packed:
            o += [I(f"v_mul_f32 v{t0}, v{vC1}, v{g0}"), I(f"v_mul_f32 v{t1}, v{vC1}, v{g1}"),
                  I(f"v_exp_f32 v{t0}, v{t0}"), I(f"v_exp_f32 v{t1}, v{t1}"),
                  I(f"v_pk_mul_f32 {q(u0,2)}, {q(g0,2)}, {q(u0,2)}"),
                  I(f"v_fma_f32 v{t0}, v{t0}, v{vC2}, v{vC2}"), I(f"v_fma_f32 v{t1}, v{t1}, v{vC2}, v{vC2}"),
                  I(f"v_rcp_f32 v{t0}, v{t0}"), I(f"v_rcp_f32 v{t1}, v{t1}"), I("s_nop 0"),
                  I(f"v_pk_mul_f32 {q(u0,2)}, {q(u0,2)}, {q(t0,2)}"),
                  I(f"v_cvt_pk_bf16_f32 v{T+p}, v{u0}, v{u1}")]
        else:
            o += [I(f"v_mul_f32 v{t0}, v{vC1}, v{g0}"), I(f"v_mul_f32 v{t1}, v{vC1}, v{g1}"),
                  I(f"v_exp_f32 v{t0}, v{t0}"), I(f"v_mul_f32 v{u0}, v{g0}, v{u0}"), I(f"v_exp_f32 v{t1}, v{t1}"),
                  I(f"v_fma_f32 v{t0}, v{t0}, v{vC2}, v{vC2}"), I(f"v_mul_f32 v{u1}, v{g1}, v{u1}"), I(f"v_rcp_f32 v{t0}, v{t0}"),
                  I(f"v_fma_f32 v{t1}, v{t1}, v{vC2}, v{vC2}"), I(f"v_rcp_f32 v{t1}, v{t1}"),
                  I(f"v_mul_f32 v{u0}, v{u0}, v{t0}"), I(f"v_mul_f32 v{u1}, v{u1}, v{t1}"),
                  I(f"v_cvt_pk_bf16_f32 v{T+p}, v{u0}, v{u1}")]
    o.append(I(f"buffer_store_dwordx4 {q(T)}, v{vL16}, {WS}, s{sHS+j} offen sc1", tag=("hst", g)))
    return o
def bf16r(d, s):
    return [I(f"v_cvt_pk_bf16_f32 v{d}, v{s}, v{s}"), I(f"v_and_b32 v{d}, 0xffff0000, v{d}")]
def stats_final():
    o = [I(f"v_add_f32 v{vS}, v{vS}, v{vS+1}"), I(f"v_add_f32 v{vQ}, v{vQ}, v{vQ+1}"),
         I(f"v_mov_b32 v{vS+1}, v{vS}"), I(f"v_mov_b32 v{vQ+1}, v{vQ}"),
         I(f"v_permlane32_swap_b32 v{vS}, v{vS+1}"), I(f"v_permlane32_swap_b32 v{vQ}, v{vQ+1}"),
         I(f"v_add_f32 v{vS}, v{vS}, v{vS+1}"), I(f"v_add_f32 v{vQ}, v{vQ}, v{vQ+1}"),
         I(f"v_mul_f32 v{vS}, 0x3b124925, v{vS}"), I(f"v_mul_f32 v{vQ}, 0x3b124925, v{vQ}"),
         I(f"v_fma_f32 v{vQ}, -v{vS}, v{vS}, v{vQ}"), I(f"v_max_f32 v{vQ}, 0, v{vQ}"),
         I(f"v_cvt_pk_bf16_f32 v{vBX}, -v{vS}, -v{vS}")]
    o += bf16r(vQ, vQ) + [I(f"v_add_f32 v{vQ}, 0x3727c5ac, v{vQ}")] + bf16r(vQ, vQ) + [I(f"v_sqrt_f32 v{vQ}, v{vQ}")] + bf16r(vQ, vQ)
    o += [I(f"v_rcp_f32 v2, v{vQ}"), I(f"v_mul_f32 v{vC2}, v{vQ}, v{vQ}"), I(f"v_and_b32 v3, 0xffff0000, v{vBX}"),
          I(f"v_mul_f32 v{vC1}, 0xbfb8aa3b, v2"), I("v_mul_f32 v3, v3, v2"),
          I(f"v_and_b32 v4, 31, v{vLane}"), I(f"v_lshlrev_b32 v4, 3, v4"), I(f"s_lshl_b32 s{sT0}, s{sW}, 8"), I(f"s_add_u32 s{sT0}, s{sT0}, {ST}"),
          I(f"v_add_u32 v4, s{sT0}, v4"), I("ds_write_b64 v4, v[2:3]", tag="stw")]
    return o
def cs_final():
    return [I(f"v_add_f32 v{vC}, v{vC}, v{vC+1}")] + bf16r(vC+1, vC) + [I(f"v_sub_f32 v{vC+1}, v{vC}, v{vC+1}"),
            I(f"v_cvt_pk_bf16_f32 v4, v{vC}, v{vC+1}"), I(f"ds_write_b32 v{vCS}, v4", tag="csw"),
            I(f"v_mov_b32 v{vC}, 0"), I(f"v_mov_b32 v{vC+1}, 0")]
def cs_reads(g):
    o = []
    for j in range(4):
        if j == 0: o.append(I(f"ds_read_b32 v{vAX}, v{vCS}", tag=("csr", g)))
        else: o.append([I(f"v_xor_b32 v4, {256*j}, v{vCS}"), I(f"ds_read_b32 v{vAX+4*j}, v4", tag=("csr", g))])
    return o
def ext_mfma(g, j):
    a = ACC[g] + 16 * j
    return I(f"v_mfma_f32_32x32x16_bf16 {q(a,16)}, {q(vAX+4*j)}, {q(vBX)}, {q(a,16)}", needs=[("csr", g)])

HR = [2, 8]
def h_loads():
    o = [[I(f"s_lshl_b32 s{sT0}, s{sCB}, 5"), I(f"s_add_u32 s{sT0}, s{sT0}, s{sRR}"), I(f"s_lshl_b32 s{sT0}, s{sT0}, 13"),
          I(f"s_lshl_b32 s{sT1}, s{sW}, 11"), I(f"s_add_u32 s{sT0}, s{sT0}, s{sT1}"),
          I(f"buffer_load_dwordx4 v[4:7], v{vL16}, {SK}, s{sT0} offen", tag="hr")],
         I(f"buffer_load_dwordx4 v[10:13], v{vL16}, {SK}, s{sT0} offen offset:1024", tag="hr"),
         I(f"buffer_load_dwordx2 v[8:9], v{vL16}, {SK}, s{sT0} offen offset:1016", tag="hr"),
         [I(f"s_and_b32 s{sT1}, s{sT1}, 2048"), I(f"s_sub_u32 s{sT0}, s{sT0}, s{sT1}"), I(f"s_sub_u32 s{sT1}, s{sT1}, 8"),
          I(f"v_add_u32 v3, s{sT1}, v{vL16}"), I(f"buffer_load_dwordx2 v[2:3], v3, {SK}, s{sT0} offen", tag="hr")]]
    return o
def h_build(T):
    o = [[I(f"s_lshr_b32 s{sT0}, s{sW}, 1"), I(f"s_mul_i32 s{sT0}, s{sT0}, 16640"), I(f"s_and_b32 s{sT1}, s{sW}, 1"), I(f"s_lshl_b32 s{sT1}, s{sT1}, 11")],
         [I(f"s_add_u32 s{sT0}, s{sT0}, s{sT1}"), I(f"s_add_u32 s{sT0}, s{sT0}, {HC+32}"), I(f"v_add_u32 v{T}, s{sT0}, v{vL16}")]]
    for un in (0, 1):
        R = HR[un]; off = 1024 * un
        o.append(I(f"ds_write_b128 v{T}, {q(R+2)} offset:{off}", needs=["hr"], tag="hw"))
        o += [I(f"v_alignbit_b32 v{T+2+d}, v{R+2+d}, v{R+1+d}, 16") for d in range(4)]
        o.append(I(f"ds_write_b128 v{T}, {q(T+2)} offset:{off+4160}", tag="hw"))
        o += [I(f"v_mov_b32 v{T+6+d}, v{R+1+d}") for d in range(4)]
        o.append(I(f"ds_write_b128 v{T}, {q(T+6)} offset:{off+8320}", tag="hw"))
        o += [I(f"v_alignbit_b32 v{T+2+d}, v{R+1+d}, v{R+d}, 16") for d in range(4)]
        o.append(I(f"ds_write_b128 v{T}, {q(T+2)} offset:{off+12480}", tag="hw"))
    o += [[I(f"v_lshrrev_b32 v{T}, 3, v{vLane}"), I(f"v_mul_u32_u24 v{T}, 4160, v{T}"), I(f"v_and_b32 v{T+1}, 7, v{vLane}")],
          [I(f"v_lshl_add_u32 v{T}, v{T+1}, 2, v{T}"), I(f"v_add_u32 v{T}, {HC}, v{T}"), I(f"ds_write_b32 v{T}, v{vBX+1}", tag="hw")]]
    return o
def u_loads():
    return [[I(f"s_lshl_b32 s{sT0}, s{sCB}, 5"), I(f"s_add_u32 s{sT0}, s{sT0}, s{sRR}"), I(f"s_lshl_b32 s{sT0}, s{sT0}, 13"),
             I(f"s_lshl_b32 s{sT1}, s{sW}, 11"), I(f"s_add_u32 s{sT0}, s{sT0}, s{sT1}")],
            [I(f"s_lshr_b32 s{sT2}, s{sW}, 1"), I(f"s_lshl_b32 s{sT2}, s{sT2}, 9"), I(f"s_add_u32 s{sT1}, s{sT1}, s{sT2}"),
             I(f"s_add_u32 m0, s{sT1}, {UB+512}"), I(f"buffer_load_dwordx4 v{vL16}, {WS}, s{sT0} offen sc1 lds", tag="u")],
            I(f"buffer_load_dwordx4 v{vL16}, {WS}, s{sT0} offen offset:1024 sc1 lds", tag="u")]

P.emit(x_reads(0, 0)); P.emit(w_reads(0, 0))
P(f"ds_read_b128 {q(192)}, v12", tag="tr"); P(f"ds_read_b128 {q(196)}, v12 offset:1024", tag="tr")
pend = [I(f"buffer_store_dwordx4 {q(192)}, v13, {WS}, s{sT0} offen sc1", needs=["tr"], tag="kst"),
        I(f"buffer_store_dwordx4 {q(196)}, v13, {WS}, s{sT1} offen sc1", tag="kst")]
e0 = []
for j in range(4): e0 += silu_tile(0, j, False, vXT + 8 * (j % 2))
E0_CH = [7, 8, 9, 10, 11, 12]
for c in range(14):
    g = c // 7; last = (c % 7 == 6)
    slots = [[] for _ in range(12)]
    for ks in range(3):
        rd = (x_reads(c, ks+1) if c < 7 else []) + w_reads(c, ks+1)
        spread(slots, rd, 4*ks, 4*ks+4)
    spread(slots, pend, 0, 12) if pend else None
    pend = []
    if c >= 7: spread(slots, wd_reads(c-7), 1, 11)
    if c in E0_CH:
        k = E0_CH.index(c); n = len(e0)
        part = e0[k*n//len(E0_CH):(k+1)*n//len(E0_CH)]
        tail_part = part[len(part)*3//4:]; spread(slots, part[:len(part)*3//4], 2 if c == 7 else 0, 12)
    else: tail_part = []
    if c == 5: spread(slots, h_build(ACC[1]+16), 0, 12)
    interleave([g1_mfma(c, ks, j) for ks in range(3) for j in range(4)], slots)
    P.wait(("wf", c, 3, 3), *([("wdf", c-7)] if c >= 7 else []))
    if c < 7:
        for i in range(16):
            P(f"v_dot2c_f32_bf16 v{vS+i%2}, s{sONE}, v{vXT+i}"); P(f"v_dot2c_f32_bf16 v{vQ+i%2}, v{vXT+i}, v{vXT+i}")
    for i in range(16): P(f"v_dot2c_f32_bf16 v{vC+i%2}, s{sONE}, v{vF0+i}")
    if last: P.emit(cs_final())
    P.emit(g1_mfma(c, 3, 0))
    if c == 6: P.emit(stats_final())
    needs = []
    if c < 13: needs.append(("w", c+1))
    if last: needs.append("csw")
    if c == 2: needs.append("kst")
    if c == 6: needs += ["stw", "hw"]
    if c == 13: needs += [("hst", 0), "u"]
    P.wait(*needs); P("s_barrier")
    if c in (6, 13) or FINE: P.emit(stamp())
    slots = [[] for _ in range(3)]
    nxt = []
    if last: nxt += cs_reads(g)
    if c < 13: nxt += (x_reads(c+1, 0) if c+1 < 7 else []) + w_reads(c+1, 0)
    P.emit(nxt[:3]); spread(slots, nxt[3:], 0, 3) if nxt[3:] else None
    if tail_part: spread(slots, tail_part, 0, 3)
    interleave([g1_mfma(c, 3, j) for j in (1, 2, 3)], slots)
    if c + 3 < 7: pend += x_loads(c+3)
    if c + 3 < 14: pend += w_loads(c+3)
    if 4 <= c <= 10: pend += wd_loads(c-4)
    if c == 11: pend += wd_loads(7) + wd_loads(8)
    if c == 12: pend += wd_loads(9) + wd_loads(10)
    if c == 13: pend += wd_loads(11) + wd_loads(12)
    if c == 2: pend = [flag_store(1)] + h_loads() + pend
    if c == 4:
        pend += [[I(f"s_sub_u32 s{sT0}, s{sWm0}, s{sPm0}"), I(f"v_add_u32 v{vWdR2}, s{sT0}, v{vWdR}"), I(f"v_add_u32 v{vWdR2+1}, s{sT0}, v{vWdR+1}")]]
    if c == 8: pend = [[I(f"v_cmp_gt_u32 vcc, 32, v{vLane}"), I(f"v_cndmask_b32 v{vFlag}, v{vP2}, v{vP1}, vcc"), poll_issue(vFlag, 1, "p1")],
                      [I(f"v_lshlrev_b32 v{vP1}, 7, v{vP1}"), I(f"v_lshlrev_b32 v{vP2}, 7, v{vP2}")],
                      [I(f"v_add_u32 v{vP1}, {WS_FLAG}, v{vP1}"), I(f"v_add_u32 v{vP2}, {WS_FLAG}, v{vP2}")]] + pend
    if c == 10: pend = [poll_check(vFlag, 1, "p1")] + u_loads() + pend
    if c == 13: pend = [flag_store(2)] + pend
    if last:
        sl = [[] for _ in range(4)]
        if c == 13: spread(sl, pend[:5], 0, 4); pend = pend[5:]
        interleave([ext_mfma(g, j) for j in range(4)], sl)

CACC = 56; CBUF = [128, 192]
def conv_reads(rr):
    b = CBUF[rr % 2]; o = []
    for p in range(8):
        o.append(I(f"ds_read_b128 {q(b+32+4*p)}, v{vCB} offset:{512*p+64*(3-rr)}", tag=("cb", rr, p)))
        for h in (0, 1):
            o.append(I(f"ds_read_b64_tr_b16 {q(b+4*p+2*h,2)}, v{vCA} offset:{64*rr+512*p+8*(1-h)}", tag=("ca", rr, p)))
    return o
for j in range(4): P(f"s_add_u32 s{sHS+j}, s{sHS+j}, 4096")
e1 = []
for j in range(4): e1 += silu_tile(1, j, True, vXT + 8 * (j % 2))
slots = [[] for _ in e1]
n = len(e1)
spread(slots, pend, 0, n//8); pend = []
spread(slots, wd_reads(7) + wd_reads(8) + [W(("wdf", 7))] + wd_loads(13) + wd_reads(9) + wd_reads(10), n//8, n*5//8)
spread(slots, [poll_issue(vP2, 2, "p2a")], n-2, n-1)
spread(slots, conv_reads(0), n*5//8, n-2)
interleave(e1, slots)
P.emit(stamp())

vHL = vXr
def hreg(i):
    i %= 32
    if i < 8: return q(224 + 4*i, 4, 'a')
    if i < 16: return q(vXT + 4*(i-8))
    return q(192 + 4*(i-16))
HORD = [(st, nt) for st in range(28) for nt in (0, 1)]
def h_load(i):
    st, nt = HORD[i]; g, f2 = st // 14, st % 14
    ld = I(f"buffer_load_dwordx4 {hreg(i)}, v{vHL+nt}, {WS}, s{sD0} offen sc1", tag=("h", i))
    return [I(f"s_mov_b32 s{sD0}, {8192*f2+4096*g}"), ld] if nt == 0 else ld
hl_setup = [I(f"s_mul_i32 s{sT0}, s{sRR}, {2*114688}"), I(f"s_lshl_b32 s{sT1}, s{sW}, 10"), I(f"s_add_u32 s{sT0}, s{sT0}, s{sT1}"),
            I(f"s_add_u32 s{sT0}, s{sT0}, {WS_H}"), I(f"v_add_u32 v{vHL}, s{sT0}, v{vL16}"), I(f"v_add_u32 v{vHL+1}, 114688, v{vHL}")]
for rr in range(4):
    b = CBUF[rr % 2]; mf = []
    for qq in range(8):
        for p in range(qq + 1):
            a = CACC + 4*qq
            src = "0" if (rr == 0 and p == 0) else q(a)
            mf.append(I(f"v_mfma_f32_16x16x32_bf16 {q(a)}, {q(b+4*p)}, {q(b+32+4*(qq-p))}, {src}", needs=[("ca", rr, qq)]))
    slots = [[] for _ in mf]
    if rr < 3: spread(slots, conv_reads(rr+1), 0, 34)
    if rr == 0: spread(slots, wd_reads(11) + wd_reads(12) + hl_setup, 2, 36)
    if rr == 1: spread(slots, wd_reads(13) + [poll_check(vP2, 2, "p2a")] + [h_load(i) for i in range(6)], 2, 36)
    if rr == 2: spread(slots, [[W(("hst", 1)), I("s_barrier")] + flag_store(3)] + [h_load(i) for i in range(6, 12)], 0, 36)
    if rr == 3: spread(slots, [h_load(i) for i in range(12, 16)], 0, 24)
    interleave(mf, slots)
P.emit(stamp())
xs = [I(f"v_lshrrev_b32 v4, 4, v{vLane}"), I(f"v_lshl_add_u32 v5, v4, 2, v{vLane}"), I("v_and_b32 v5, 15, v5"), I("v_lshl_add_u32 v5, v4, 4, v5"),
      I(f"s_lshl_b32 s{sT0}, s{sW}, 13"), I(f"v_lshl_add_u32 v8, v5, 4, s{sT0}"),
      I(f"v_and_b32 v4, 3, v{vLane}"), I(f"v_lshrrev_b32 v5, 2, v{vLane}"), I("v_lshl_add_u32 v5, v4, 2, v5"), I("v_and_b32 v5, 15, v5"), I("v_lshl_add_u32 v5, v4, 4, v5"),
      I(f"s_lshl_b32 s{sT0}, s{sW}, 11"), I(f"v_lshl_add_u32 v3, v5, 4, s{sT0}")]
P.emit(xs)
for qq in range(8):
    P(f"ds_write_b128 v8, {q(CACC+4*qq)} offset:{WR+1024*qq}", tag="xw")
    P.emit(h_load(16 + qq))
P(f"s_lshl_b32 s{sT0}, s{sW}, 10"); P(f"s_add_u32 s{sT0}, s{sT0}, {UB+512}"); P(f"v_lshl_add_u32 v7, v{vLane}, 3, s{sT0}")
P(f"s_lshl_b32 s{sT0}, s{sCB}, 5"); P(f"s_add_u32 s{sT0}, s{sT0}, s{sRR}"); P(f"s_lshl_b32 s{sT0}, s{sT0}, 13")
P(f"s_lshl_b32 s{sT1}, s{sW}, 11"); P(f"s_add_u32 s{sT0}, s{sT0}, s{sT1}"); P(f"s_add_u32 s{sT0}, s{sT0}, {WS_Y}")
P(f"s_and_b32 s{sD1}, s{sDD}, 0xffff"); P(f"s_lshl_b32 s{sD2}, s{sDD}, 16"); P(f"s_lshr_b32 s{sD3}, s{sDD}, 16"); P(f"s_and_b32 s{sDD}, s{sDD}, 0xffff0000")
UR = 88
for e in (0, 1):
    for ch in (0, 1): P(f"ds_read_b64 {q(UR+4*e+2*ch,2)}, v7 offset:{4608*ch+512*e}", tag="ur")
P.wait("xw"); P("s_barrier")
for e in (0, 1):
    for w2 in range(4): P(f"ds_read_b128 {q(CACC+16*e+4*w2)}, v3 offset:{WR+8192*w2+1024*e}", tag=("xr", e))
for i in range(24, 28): P.emit(h_load(i))
P.emit(poll_issue(vP2, 3, "p2b"))
for e in (0, 1):
    b = CACC + 16 * e
    P.wait(("xr", e))
    for ch in (0, 1):
        for jj in (0, 2): P(f"v_pk_add_f32 {q(b+8*ch+jj,2)}, {q(b+8*ch+jj,2)}, {q(b+8*ch+4+jj,2)}")
    for ch in (0, 1):
        for jj in range(4):
            sd = [[sD1, sD2], [sD3, sDD]][ch][jj & 1]
            P(f"v_dot2c_f32_bf16 v{b+8*ch+jj}, s{sd}, v{UR+4*e+2*ch+(jj>>1)}")
    for jj in range(4): P(f"v_cvt_pk_bf16_f32 v{b+4+jj}, v{b+jj}, v{b+8+jj}")
    P(f"buffer_store_dwordx4 {q(b+4)}, v{vL16}, {WS}, s{sT0} offen offset:{1024*e} sc1", tag="yst")
P.emit(stamp())

GA = 128
def g2_mfma(i, mt):
    st, nt = HORD[i]; a = GA + 32*nt + 16*mt
    src = "0" if st == 0 else q(a, 16)
    return I(f"v_mfma_f32_32x32x16_bf16 {q(a,16)}, {q(wd_reg(st, mt),4,'a')}, {hreg(i)}, {src}", needs=[("h", i)])
mf = [g2_mfma(i, mt) for i in range(56) for mt in (0, 1)]
slots = [[] for _ in mf]
H1_AT = 12
slots[H1_AT] += poll_check(vP2, 3, "p2b")
for i in range(28, 56):
    s = H1_AT + 1 + 2 * (i - 28)
    assert i < 32 or s > 2 * (i - 32) + 1
    x = h_load(i); slots[s] += x if isinstance(x, list) else [x]
slots[30] += [W("yst"), I("s_barrier")] + flag_store(4)
XR = 56; vFA = 2
fin_setup = [I(f"v_lshrrev_b32 v5, 3, v{vLane}"), I(f"v_and_b32 v6, 7, v{vLane}"),
    I("v_mul_u32_u24 v8, 896, v5"), I("v_lshl_add_u32 v8, v6, 4, v8"),
    I(f"s_lshl_b32 s{sT0}, s{sRR}, 3"), I(f"s_add_u32 s{sT0}, s{sT0}, s{sW}"), I(f"s_mul_i32 s{sT0}, s{sT0}, {8*896}"),
    I(f"s_lshl_b32 s{sT1}, s{sCB}, 7"), I(f"s_add_u32 s{sD2}, s{sT0}, s{sT1}"), I(f"s_add_u32 s{sD3}, s{sD2}, {32*896}"),
    I(f"buffer_load_dwordx4 {q(XR)}, v8, {X}, s{sD2} offen", tag="xt"), I(f"buffer_load_dwordx4 {q(XR+4)}, v8, {X}, s{sD3} offen", tag="xt"),
    I("v_lshlrev_b32 v9, 1, v6"), I("v_xor_b32 v9, v9, v5"), I("v_lshlrev_b32 v9, 4, v9"), I("v_lshl_add_u32 v9, v5, 8, v9"),
    I(f"s_lshl_b32 s{sT0}, s{sW}, 11"), I(f"v_add_u32 v9, s{sT0}, v9"), I("v_xor_b32 v10, 16, v9"),
    I(f"v_lshrrev_b32 v11, 5, v{vLane}"), I(f"s_lshl_b32 s{sT0}, s{sW}, 1"), I(f"v_add_u32 v11, s{sT0}, v11"), I("v_xor_b32 v11, v11, v6"),
    I("v_lshlrev_b32 v11, 4, v11"), I("v_lshl_add_u32 v11, v6, 10, v11"), I("v_and_b32 v4, 3, v5"), I("v_lshl_add_u32 v11, v4, 2, v11"), I(f"v_add_u32 v11, {YT}, v11"),
    I(f"s_and_b32 s{sT0}, s{sRR}, 1"), I(f"s_lshl_b32 s{sT0}, s{sT0}, 3"), I(f"s_add_u32 s{sT0}, s{sT0}, s{sW}"), I(f"s_lshl_b32 s{sT0}, s{sT0}, 6"),
    I(f"s_add_u32 s{sT0}, s{sT0}, {ST}"), I(f"v_lshl_add_u32 v12, v5, 3, s{sT0}"),
    I(f"v_lshrrev_b32 v4, 5, v{vLane}"), I("v_xor_b32 v4, v4, v6"), I("v_lshlrev_b32 v4, 4, v4"), I(f"v_and_b32 v13, 31, v{vLane}"),
    I("v_lshl_add_u32 v4, v13, 8, v4"), I(f"s_lshl_b32 s{sT0}, s{sW}, 13"), I(f"v_add_u32 v{vWA}, s{sT0}, v4"),
    I(f"v_xor_b32 v{vWA+1}, 32, v{vWA}"), I(f"v_xor_b32 v{vWA+2}, 64, v{vWA}"), I(f"v_xor_b32 v{vWA+3}, 96, v{vWA}"),
    I(f"v_and_b32 v13, 15, v{vLane}"), I(f"s_lshl_b32 s{sT0}, s{sW}, 1"), I(f"v_xor_b32 v13, s{sT0}, v13"), I("v_lshlrev_b32 v13, 4, v13"),
    I(f"v_lshrrev_b32 v3, 4, v{vLane}"), I("v_lshl_add_u32 v3, v3, 13, v13"), I("v_xor_b32 v4, 16, v3"), I(f"v_add_u32 v4, {32768-1024}, v4"),
    I(f"s_lshl_b32 s{sT0}, s{sCB}, 2"), I(f"s_add_u32 s{sT0}, s{sT0}, s{sW}"), I(f"s_lshl_b32 s{sT0}, s{sT0}, 16"),
    I(f"s_lshl_b32 s{sT1}, s{sRR}, 8"), I(f"s_add_u32 s{sT0}, s{sT0}, s{sT1}"), I(f"s_add_u32 s{sD1}, s{sT0}, {WS_Y}"),
    I(f"s_lshl_b32 s{sT1}, s{sW}, 11"), I(f"s_add_u32 m0, s{sT1}, {YT}")]
spread(slots, fin_setup, 32, 68)
slots[70] += [poll_issue(vP1, 4, "p3")]
slots[96] += poll_check(vP1, 4, "p3") + [I(f"buffer_load_dwordx4 v3, {WS}, s{sD1} offen sc1 lds", tag="yt"),
                                        I(f"buffer_load_dwordx4 v4, {WS}, s{sD1} offen offset:1024 sc1 lds", tag="yt")]
interleave(mf, slots)
P.emit(stamp())
for nt in (0, 1):
    for mt in (0, 1):
        for i in range(4): P(f"ds_write_b128 v{vWA+i}, {q(GA+32*nt+16*mt+4*i)} offset:{32768*nt+128*mt}", tag="rw")
P.wait("rw", "yt", "xt"); P("s_barrier")
RB = [128, 192]; YR = 64; SR = 72
for nt in (0, 1):
    for jj in range(4): P(f"ds_read_b32 v{YR+4*nt+jj}, v11 offset:{256*jj+128*nt}", tag=("yr", nt))
    P(f"ds_read_b64 {q(SR+2*nt,2)}, v12 offset:{256*nt}", tag=("yr", nt))
    for w2 in range(4):
        for e in (0, 1): P(f"ds_read_b128 {q(RB[nt]+8*w2+4*e)}, v{9+e} offset:{32768*nt+8192*w2}", tag=("rr", nt))
    b = RB[nt]; xf = b + 32; yf = b + 40; t = b + 48
    for d in range(4):
        P(f"v_lshlrev_b32 v{xf+2*d}, 16, v{XR+4*nt+d}"); P(f"v_and_b32 v{xf+2*d+1}, 0xffff0000, v{XR+4*nt+d}")
    P.wait(("yr", nt))
    for d in range(4):
        P(f"v_lshlrev_b32 v{yf+2*d}, 16, v{YR+4*nt+d}"); P(f"v_and_b32 v{yf+2*d+1}, 0xffff0000, v{YR+4*nt+d}")
    for d in range(8): P(f"v_fma_f32 v{t+d}, v{xf+d}, v{SR+2*nt}, v{SR+2*nt+1}")
    for d in range(0, 8, 2): P(f"v_pk_mul_f32 {q(yf+d,2)}, {q(yf+d,2)}, {q(t+d,2)}")
for nt in (0, 1):
    b = RB[nt]; xf = b + 32; yf = b + 40; t = b + 48
    P.wait(("rr", nt))
    for d in range(0, 8, 2): P(f"v_pk_add_f32 {q(b+d,2)}, {q(b+d,2)}, {q(b+8+d,2)}"); P(f"v_pk_add_f32 {q(b+16+d,2)}, {q(b+16+d,2)}, {q(b+24+d,2)}")
    for d in range(0, 8, 2): P(f"v_pk_add_f32 {q(b+d,2)}, {q(b+d,2)}, {q(b+16+d,2)}")
    for d in range(8): P(f"v_mul_f32 v{t+d}, 0xbfb8aa3b, v{b+d}")
    for d in range(8): P(f"v_exp_f32 v{t+d}, v{t+d}")
    for d in range(0, 8, 2): P(f"v_pk_mul_f32 {q(yf+d,2)}, {q(yf+d,2)}, {q(b+d,2)}")
    for d in range(8): P(f"v_add_f32 v{t+d}, 1.0, v{t+d}")
    for d in range(8): P(f"v_rcp_f32 v{t+d}, v{t+d}")
    for d in range(0, 8, 2): P(f"v_pk_fma_f32 {q(xf+d,2)}, {q(yf+d,2)}, {q(t+d,2)}, {q(xf+d,2)}")
    for d in range(4): P(f"v_cvt_pk_bf16_f32 v{b+d}, v{xf+2*d}, v{xf+2*d+1}")
    P(f"buffer_store_dwordx4 {q(b)}, v8, {OUT}, s{[sD2, sD3][nt]} offen", tag="ost")
if HOLD: P.emit(stamp())
if STAMP:
    P.wait_all(); P.emit(stamp())
    P("s_memrealtime s[16:17]", tag="stp"); P("v_mov_b32 v14, s16", needs=["stp"]); P(f"buffer_store_dword v14, v15, {WS}, s{sSTP} offen offset:252", tag="stpst")
P("Lend:"); P("s_endpgm")

ins, added = pad_hazards(P.out)
for i in ins: i.t = i.t.replace("NLINES", "200")
tmp = ins + [I(l) for s in slow for l in s.splitlines()]
total, mis = align8(tmp)
nl = min(255, (total - 64) // 128)
assert nl > 64
body = "\n".join(("" if i.t.endswith(":") else "    ") + i.t.replace("v_min_u32 v2, 200", f"v_min_u32 v2, {nl}") for i in tmp)
hdr = open(f"cdna_kernels/{NAME}.s.ref").read().split("; Override launch")[0]
txt = hdr + f"""; @launch grid=({NWG},1,1) block=(256,1,1) lds={LDS_SIZE}
; generated by gen/gen.py (hand-written schedule): one persistent launch, 224 workgroups
;   kv = shiftconv(k)*v -> GEMM1 (gate/up, LayerNorm folded in) -> Toeplitz-MFMA long conv -> GEMM2 + output gate
.amdgcn_target "amdgcn-amd-amdhsa--gfx950"
.text
.globl {NAME}_kernel
.p2align 8
.type {NAME}_kernel,@function
{NAME}_kernel:
{body}
.section .rodata,"a"
.p2align 6
.amdhsa_kernel {NAME}_kernel
  .amdhsa_next_free_vgpr 512
  .amdhsa_next_free_sgpr 102
  .amdhsa_accum_offset 256
  .amdhsa_group_segment_fixed_size 0
  .amdhsa_kernarg_size 104
  .amdhsa_user_sgpr_count 2
  .amdhsa_user_sgpr_kernarg_segment_ptr 1
  .amdhsa_system_sgpr_workgroup_id_x 1
  .amdhsa_float_denorm_mode_32 3
.end_amdhsa_kernel
"""
open(OUTP, "w").write(txt)
print(f"{OUTP}: {len(tmp)} lines, {total} bytes, nop states added {added}, misaligned 8B {mis}")
```

```python
import sys, os
sys.path.insert(0, os.path.dirname(os.path.abspath(__file__)))
from asmlib import *

NAME = "recurrent_scan__ssm_conv_h3__swiglu_ffn__prompt"
STAMP = "--stamp" in sys.argv
FINE = "--fine" in sys.argv
HOLD = [a[7:] for a in sys.argv if a.startswith("--hold=")]
HOLD = tuple(int(x) for x in HOLD[0].split(":")) if HOLD else None
PROBE = [a[8:] for a in sys.argv if a.startswith("--probe=")]
PROBE = PROBE[0].split(":") if PROBE else None
def probe(name):
    if not PROBE or PROBE[0] != name: return []
    return [I("s_memrealtime s[28:29]", tag="stp"), I(f"s_sub_u32 s28, s28, s{sSTP}", needs=["stp"])]
OUTP = [a for a in sys.argv[1:] if not a.startswith("--")]
OUTP = OUTP[0] if OUTP else f"cdna_kernels/{NAME}.s"

NWG = 224
WS_KVT = 0; WS_Y = 2 << 20; WS_H = 4 << 20; WS_FLAG = 11 << 20; WS_STAMP = 12 << 20; WS_SIZE = 16 << 20
WR = 0; PS = 49152; HC = 98304; UB = 131584; ST = 140800; CS = 142336; YT = 143360; LDS_SIZE = 151552
KV = HC; TB = HC + 20480
assert CS % 1024 == 0
sW, sR_, sCB, sRR, sF = 3, 4, 5, 6, 7
sXO = 8
sT0, sT1, sT2 = 15, 42, 43
X, K, V, SH, SK, WG, WU, WD, OUT, DBG, WS = (f"s[{b}:{b+3}]" for b in range(44, 88, 4))
sWm0, sPm0, sONE, sD0, sD1, sD2, sD3 = 88, 89, 90, 91, 92, 93, 94
sHS = 96
sSPIN = 95; sDD = 100; sSTP = 101
vLane = 1
vWA = 16; vWg = 20; vWu = 22; vXd = 24; vXr = 28; vL16 = 32; vWdD = 33; vWdR = 35
vFlag = 37; vP1 = 38; vP2 = 39; vPoll = 40; vS = 41; vQ = 43; vC = 45; vC1 = 47; vC2 = 48
vCA = 49; vCB = 50; vCS = 51; vBX = 52
vFlagW = 0
vF0 = 56
vF1 = 72
vXT = 96; vAX = 112; ACC = [128, 192]
def q(b, n=4, k="v"): return f"{k}[{b}:{b+n-1}]"
def wfrag(ks, j): return vF0 + 4 * (ks % 4) if j == 0 else vF1 + 12 * (ks % 2) + 4 * (j - 1)

P = Prog()
slow = []
nstamp = [0]
def stamp():
    if PROBE:
        n = nstamp[0]; nstamp[0] += 1
        return probe(f"s{n}")
    if HOLD:
        n = nstamp[0]; nstamp[0] += 1
        if n != HOLD[0]: return []
        return [I("Lhold:"), I("s_memrealtime s[16:17]", tag="stp"), I(f"s_sub_u32 s16, s16, s{sSTP}", needs=["stp"]),
                I(f"s_cmp_lt_u32 s16, {HOLD[1]}"), I("s_cbranch_scc1 Lhold")]
    if not STAMP: return []
    n = nstamp[0]; nstamp[0] += 1
    return [I(f"s_memtime s[16:17]", tag="stp"), I(f"v_mov_b32 v14, s16", needs=["stp"]),
            I(f"buffer_store_dword v14, v15, {WS}, s{sSTP} offen offset:{4*n}", tag="stpst")]

def srd(name, lo, size):
    b = int(name[2:name.index(":")])
    return [f"s_mov_b32 s{b}, s{lo}", f"s_and_b32 s{b+1}, s{lo+1}, 0xffff", f"s_mov_b32 s{b+2}, {size}", f"s_mov_b32 s{b+3}, 0x20000"]

def interleave(mf, fillers):
    for m, fl in zip(mf, fillers):
        P.emit(m); P.emit(fl)

def spread(slots, items, lo=0, hi=None):
    hi = len(slots) if hi is None else hi
    n = hi - lo
    for k, it in enumerate(items):
        s = lo + (k * n) // len(items)
        slots[s].extend(it if isinstance(it, list) else [it])

def poll_ld(voff, stage):
    if stage == 1: return f"buffer_load_ubyte v{vPoll}, v{voff}, {DBG}, 0 offen sc1"
    return f"buffer_load_dword v{vPoll}, v{voff}, {WS}, 0 offen sc1"
def poll_issue(voff, stage, tag): return I(poll_ld(voff, stage), tag=tag)
def poll_check(voff, stage, tag):
    n = len(slow)
    slow.append(f"""Lslow{n}:
    s_mov_b32 s{sSPIN}, 0
Lspin{n}:
    s_sleep {8 if stage == 1 else 1}
    {poll_ld(voff, stage)}
    s_add_u32 s{sSPIN}, s{sSPIN}, 1
    s_waitcnt vmcnt(0)
    v_cmp_gt_u32 vcc, {stage}, v{vPoll}
    s_cmp_gt_u32 s{sSPIN}, 0x40000
    s_cbranch_scc1 Lback{n}
    s_cbranch_vccnz Lspin{n}
    s_branch Lback{n}""")
    return [I(f"v_cmp_gt_u32 vcc, {stage}, v{vPoll}", needs=[tag]), I("s_nop 0"), I(f"s_cbranch_vccnz Lslow{n}"), I(f"Lback{n}:")]
def flag_store(stage):
    if stage == 1: return [I(f"v_mov_b32 v2, 1"), I(f"buffer_store_byte v2, v{vFlag}, {DBG}, 0 offen sc1", tag="flag1")]
    return [I(f"v_mov_b32 v2, {stage}"), I(f"buffer_store_dword v2, v{vFlagW}, {WS}, 0 offen sc1", tag=f"flag{stage}")]

P("s_cmp_ge_u32 s2, %d" % NWG); P("s_cbranch_scc1 Lend")
if HOLD or PROBE: P("s_memrealtime s[98:99]", tag="ka")
P("s_load_dwordx16 s[16:31], s[0:1], 0", tag="ka"); P("s_load_dwordx8 s[32:39], s[0:1], 64", tag="ka"); P("s_load_dwordx2 s[40:41], s[0:1], 96", tag="ka")
P("s_getpc_b64 s[42:43]")
P("v_min_u32 v2, NLINES, v0"); P("v_lshlrev_b32 v2, 7, v2"); P("v_mov_b32 v3, s43")
P("v_add_co_u32 v2, vcc, s42, v2"); P("v_addc_co_u32 v3, vcc, 0, v3, vcc")
P("global_load_dword v250, v[2:3], off", tag="pf")
P(f"v_and_b32 v{vLane}, 63, v0"); P("v_lshrrev_b32 v5, 6, v0"); P(f"v_readfirstlane_b32 s{sW}, v5")
P("s_and_b32 s8, s2, 7"); P("s_lshr_b32 s9, s2, 3")
P("s_mul_i32 s10, s9, 37"); P("s_lshr_b32 s10, s10, 8")
P("s_mul_i32 s11, s10, 7"); P(f"s_sub_u32 s{sCB}, s9, s11")
P("s_lshr_b32 s11, s8, 1"); P("s_and_b32 s12, s8, 1")
P(f"s_lshl_b32 s{sR_}, s11, 2"); P(f"s_add_u32 s{sR_}, s{sR_}, s10")
P(f"s_lshl_b32 s{sRR}, s{sR_}, 1"); P(f"s_add_u32 s{sRR}, s{sRR}, s12")
P(f"s_mul_i32 s{sF}, s12, 7"); P(f"s_add_u32 s{sF}, s{sF}, s{sCB}")
P("s_lshl_b32 s10, s10, 1"); P(f"s_add_u32 s10, s10, s{sCB}"); P("s_add_u32 s10, s10, s11")
P("s_mul_i32 s9, s10, 37"); P("s_lshr_b32 s9, s9, 8"); P("s_mul_i32 s9, s9, 7"); P("s_sub_u32 s10, s10, s9")
P("s_lshl_b32 s8, s10, 7")
for c in range(1, 7):
    P(f"s_add_u32 s{sXO+c}, s{sXO+c-1}, 128"); P(f"s_cmp_eq_u32 s{sXO+c}, 896"); P(f"s_cselect_b32 s{sXO+c}, 0, s{sXO+c}")
P(f"s_lshl_b32 s{sWm0}, s{sW}, 12"); P(f"s_mul_i32 s{sPm0}, s{sW}, 12288"); P(f"s_add_u32 s{sPm0}, s{sPm0}, {PS}")
P(f"s_mov_b32 s{sONE}, 0x3f803f80")
P(f"v_lshrrev_b32 v5, 3, v{vLane}"); P(f"v_and_b32 v6, 7, v{vLane}"); P(f"v_bfe_u32 v7, v{vLane}, 4, 1")
P(f"v_lshlrev_b32 v{vL16}, 4, v{vLane}")
P("v_lshlrev_b32 v8, 2, v7"); P("v_xor_b32 v8, v8, v6"); P("v_lshlrev_b32 v8, 4, v8")
P("v_mul_u32_u24 v9, 896, v5"); P("v_add_u32 v8, v8, v9")
P(f"s_lshl_b32 s{sT0}, s{sCB}, 7"); P(f"s_mul_i32 s{sT1}, s{sW}, {16*896}"); P(f"s_add_u32 s{sT0}, s{sT0}, s{sT1}")
P(f"v_add_u32 v{vWdD}, s{sT0}, v8"); P(f"v_add_u32 v{vWdD+1}, {8*896-1024}, v{vWdD}")
P(f"s_mul_i32 s{sT1}, s{sRR}, {64*896}")
P(f"v_add_u32 v10, s{sT1}, v{vWdD}")
P(f"v_add_u32 v11, {8*896-1024}, v10"); P(f"v_subrev_u32 v12, {8*896}, v10")
P.wait("ka")
if HOLD or PROBE: P(f"s_mov_b32 s{sSTP}, s98")
P.emit(probe("ka"))
P.emit(srd(K, 18, 1835008)); P.emit(srd(V, 20, 1835008))
P(f"s_mul_i32 s{sT2}, s{sW}, 5120"); P(f"s_add_u32 s{sT2}, s{sT2}, {KV}")
P(f"s_mov_b32 m0, s{sT2}"); P(f"buffer_load_dwordx4 v12, {K}, 0 offen lds", tag="kv")
P(f"s_add_u32 m0, s{sT2}, 1024"); P(f"buffer_load_dwordx4 v10, {K}, 0 offen lds", tag="kv"); P(f"buffer_load_dwordx4 v11, {K}, 0 offen offset:1024 lds", tag="kv")
P(f"s_add_u32 m0, s{sT2}, 3072"); P(f"buffer_load_dwordx4 v10, {V}, 0 offen lds", tag="kv"); P(f"buffer_load_dwordx4 v11, {V}, 0 offen offset:1024 lds", tag="kv")
P.emit(srd(SH, 22, 3584))
P(f"s_lshl_b32 s{sT0}, s{sCB}, 9"); P(f"v_lshlrev_b32 v9, 3, v{vLane}")
P(f"buffer_load_dwordx2 v[128:129], v9, {SH}, s{sT0} offen", tag="kv")
P.emit(srd(X, 16, 1835008)); P.emit(srd(WG, 30, 1605632)); P.emit(srd(WU, 32, 1605632))
P(f"s_lshl_b32 s{sT0}, s{sR_}, 2"); P(f"s_add_u32 s{sT0}, s{sT0}, s{sW}"); P(f"s_mul_i32 s{sT0}, s{sT0}, {32*896}")
P(f"v_lshrrev_b32 v9, 4, v{vLane}"); P("v_xor_b32 v9, v9, v6"); P("v_lshlrev_b32 v9, 4, v9")
P("v_mul_u32_u24 v13, 896, v5"); P(f"v_add_u32 v13, s{sT0}, v13")
P(f"v_add_u32 v{vXd}, v13, v9"); P("v_xor_b32 v9, 64, v9"); P("v_add_u32 v9, v13, v9")
P(f"v_add_u32 v{vXd+1}, {8*896-1024}, v9"); P(f"v_add_u32 v{vXd+2}, {16*896-2048}, v{vXd}"); P(f"v_add_u32 v{vXd+3}, {24*896-3072}, v9")
P(f"s_mul_i32 s{sT0}, s{sW}, {16*3584}"); P(f"s_lshl_b32 s{sT1}, s{sF}, 8"); P(f"s_add_u32 s{sT0}, s{sT0}, s{sT1}")
P("v_mul_u32_u24 v13, 3584, v5"); P(f"v_add_u32 v13, s{sT0}, v13")
P("v_lshlrev_b32 v9, 1, v7"); P("v_xor_b32 v9, v9, v6"); P("v_lshlrev_b32 v9, 4, v9")
P(f"v_add_u32 v{vWg}, v13, v9"); P("v_xor_b32 v9, 64, v9"); P(f"v_add_u32 v{vWu}, v13, v9")
P(f"v_add_u32 v{vWg+1}, {8*3584-1024}, v{vWg}"); P(f"v_add_u32 v{vWu+1}, {8*3584-1024}, v{vWu}")

def x_loads(c):
    s = c % 3
    return [[I(f"s_add_u32 m0, s{sPm0}, {4096*s}"), I(f"buffer_load_dwordx4 v{vXd}, {X}, s{sXO+c} offen lds", tag=("x", c))]] + \
           [I(f"buffer_load_dwordx4 v{vXd+i}, {X}, s{sXO+c} offen offset:{1024*i} lds", tag=("x", c)) for i in (1, 2, 3)]
def w_loads(c):
    s = c % 3; pre = []
    if c == 7: pre = [I(f"v_add_u32 v{r}, 128, v{r}") for r in (vWg, vWg+1, vWu, vWu+1)]
    return [pre + [I(f"s_mul_i32 s{sD0}, s{sXO+c%7}, 1792"), I(f"s_add_u32 m0, s{sWm0}, {WR+16384*s}"),
             I(f"buffer_load_dwordx4 v{vWg}, {WG}, s{sD0} offen lds", tag=("w", c))],
            I(f"buffer_load_dwordx4 v{vWg+1}, {WG}, s{sD0} offen offset:1024 lds", tag=("w", c)),
            [I(f"s_add_u32 m0, s{sWm0}, {WR+16384*s+2048}"), I(f"buffer_load_dwordx4 v{vWu}, {WU}, s{sD0} offen lds", tag=("w", c))],
            I(f"buffer_load_dwordx4 v{vWu+1}, {WU}, s{sD0} offen offset:1024 lds", tag=("w", c))]
P.emit(x_loads(0)); P.emit(w_loads(0)); P.emit(x_loads(1))
P.emit(srd(SK, 24, 1835008)); P.emit(srd(WD, 34, 1605632)); P.emit(srd(OUT, 36, 1835008)); P.emit(srd(DBG, 38, 256)); P.emit(srd(WS, 40, WS_SIZE))
P(f"s_lshl_b32 s{sT0}, s{sCB}, 5"); P(f"s_add_u32 s{sT0}, s{sT0}, s{sRR}")
P(f"s_lshl_b32 s{sT1}, s{sT0}, 2"); P(f"s_load_dword s{sDD}, s[26:27], s{sT1}", tag="dd")
P(f"v_mov_b32 v9, s{sT0}"); P("v_mov_b32 v13, 0x100000"); P("v_cmp_eq_u32 vcc, 0, v0"); P(f"v_cndmask_b32 v{vFlag}, v13, v9, vcc")
P(f"v_lshlrev_b32 v{vFlagW}, 7, v{vFlag}"); P(f"v_add_u32 v{vFlagW}, {WS_FLAG}, v{vFlagW}"); P("v_mov_b32 v13, 0")
P(f"buffer_store_dword v13, v{vFlagW}, {WS}, 0 offen sc1", tag="kst")
P(f"s_lshl_b32 s{sT1}, s{sCB}, 5"); P(f"v_and_b32 v9, 31, v{vLane}"); P(f"v_add_u32 v{vP1}, s{sT1}, v9")
P(f"v_min_u32 v9, 13, v9"); P("v_lshrrev_b32 v13, 1, v9"); P("v_lshlrev_b32 v13, 5, v13"); P("v_and_b32 v9, 1, v9")
P(f"s_lshl_b32 s{sT1}, s{sR_}, 1"); P(f"v_add3_u32 v{vP2}, v13, v9, s{sT1}")
if STAMP:
    P(f"s_lshl_b32 s{sSTP}, s2, 2"); P(f"s_add_u32 s{sSTP}, s{sSTP}, s{sW}"); P(f"s_lshl_b32 s{sSTP}, s{sSTP}, 8"); P(f"s_add_u32 s{sSTP}, s{sSTP}, {WS_STAMP}")
    P("v_mov_b32 v13, 0x40000000"); P(f"v_cmp_eq_u32 vcc, 0, v{vLane}"); P("v_cndmask_b32 v15, v13, 0, vcc")
    P("s_memrealtime s[16:17]", tag="stp"); P("v_mov_b32 v14, s16", needs=["stp"]); P(f"buffer_store_dword v14, v15, {WS}, s{sSTP} offen offset:248", tag="stpst")
P.emit(stamp())
P(f"v_and_b32 v2, 3, v{vLane}"); P(f"v_bfe_u32 v3, v{vLane}, 2, 2"); P(f"v_bfe_u32 v4, v{vLane}, 4, 1"); P(f"v_lshrrev_b32 v9, 5, v{vLane}")
P("v_lshlrev_b32 v10, 3, v2"); P("v_lshl_add_u32 v10, v3, 7, v10")
P("v_lshrrev_b32 v11, 1, v3")
P("v_lshl_add_u32 v12, v4, 11, v10"); P("v_lshl_add_u32 v12, v9, 10, v12")
P("v_lshl_add_u32 v13, v4, 1, v11"); P(f"v_xor_b32 v13, s{sW}, v13")
P(f"v_lshl_add_u32 v{vWA}, v13, 5, v12")
for j in (1, 2, 3): P(f"v_xor_b32 v{vWA+j}, {32*j}, v{vWA}")
P("v_lshl_add_u32 v12, v9, 9, v10"); P("v_lshl_add_u32 v13, v11, 1, v4"); P("v_lshl_add_u32 v12, v13, 5, v12")
P(f"v_add_u32 v{vWdR}, s{sPm0}, v12"); P(f"v_xor_b32 v{vWdR+1}, 64, v{vWdR}")
P(f"v_lshrrev_b32 v12, 4, v{vLane}"); P("v_lshlrev_b32 v13, 1, v11"); P("v_xor_b32 v13, v13, v12"); P("v_lshl_add_u32 v130, v13, 5, v10")
P(f"v_add_u32 v130, s{sT2}, v130")
P(f"s_lshr_b32 s{sT0}, s{sW}, 1"); P(f"s_and_b32 s{sT1}, s{sW}, 1"); P(f"s_lshl_b32 s{sT1}, s{sT1}, 8")
P(f"s_mul_i32 s{sD0}, s{sT0}, 16640"); P(f"s_add_u32 s{sD0}, s{sD0}, s{sT1}"); P(f"s_add_u32 s{sD0}, s{sD0}, {HC+56}")
P(f"s_mul_i32 s{sD1}, s{sT0}, 4608"); P(f"s_sub_u32 s{sD1}, s{sD1}, s{sT1}"); P(f"s_add_u32 s{sD1}, s{sD1}, {UB+288}")
P("v_mul_u32_u24 v13, 4160, v3"); P("v_lshl_add_u32 v13, v2, 3, v13"); P("v_lshlrev_b32 v12, 4, v12"); P("v_sub_u32 v13, v13, v12"); P(f"v_add_u32 v{vCA}, s{sD0}, v13")
P(f"v_and_b32 v13, 15, v{vLane}"); P("v_lshl_add_u32 v13, v13, 5, v12"); P(f"v_add_u32 v{vCB}, s{sD1}, v13")
P(f"v_and_b32 v12, 31, v{vLane}"); P(f"v_bfe_u32 v13, v{vLane}, 1, 3"); P("v_xor_b32 v13, v13, v9"); P("v_lshlrev_b32 v13, 4, v13")
P("v_lshl_add_u32 v13, v12, 7, v13"); P(f"v_add_u32 v{vXr}, s{sPm0}, v13")
for j in (1, 2, 3): P(f"v_xor_b32 v{vXr+j}, {32*j}, v{vXr}")
P(f"s_lshl_b32 s{sT0}, s{sW}, 8"); P(f"s_add_u32 s{sT0}, s{sT0}, {CS}"); P(f"v_lshl_add_u32 v{vCS}, v{vLane}, 2, s{sT0}")
P(f"s_lshl_b32 s{sT0}, s{sR_}, 2"); P(f"s_add_u32 s{sT0}, s{sT0}, s{sW}"); P(f"s_mul_i32 s{sT0}, s{sT0}, 114688")
P(f"s_lshl_b32 s{sT1}, s{sF}, 13"); P(f"s_add_u32 s{sT0}, s{sT0}, s{sT1}"); P(f"s_add_u32 s{sT0}, s{sT0}, {WS_H}")
for j in range(4):
    P(f"s_xor_b32 s{sT1}, s{sW}, {j}"); P(f"s_lshl_b32 s{sT1}, s{sT1}, 10"); P(f"s_add_u32 s{sHS+j}, s{sT0}, s{sT1}")
for r in list(range(vS, vS+6)) + list(range(vBX, vBX+4)) + list(range(vAX, vAX+16)): P(f"v_mov_b32 v{r}, 0")
P(f"v_mul_u32_u24 v13, 4608, v9"); P(f"v_lshl_add_u32 v13, v12, 4, v13"); P(f"v_add_u32 v13, {UB}, v13")
P(f"ds_write_b128 v13, {q(vAX)}", tag="z")
P.emit(w_loads(1))

KD = 132; VD = 142; KO = 150; TMP = 160
P.emit(probe("prekv")); P.wait("kv"); P.emit(probe("kv"))
for b in range(5): P(f"ds_read_b64_tr_b16 {q(KD+2*b,2)}, v130 offset:{512*(b+1)}", needs=["kv"], tag="kd")
for b in range(4): P(f"ds_read_b64_tr_b16 {q(VD+2*b,2)}, v130 offset:{3072+512*b}", tag="vd")
P.emit(x_loads(2)); P.emit(w_loads(2))
Wa, Wb, Wc, Wd_, We = 2, 3, 4, 10, 11
P(f"v_alignbit_b32 v{Wa}, v129, v129, 16"); P(f"v_alignbit_b32 v{Wb}, v128, v128, 16")
P(f"v_and_b32 v{Wc}, 0xffff0000, v129"); P(f"v_and_b32 v{We}, 0xffff, v128")
P(f"v_and_b32 v12, 0xffff, v129"); P(f"v_and_b32 v13, 0xffff0000, v128"); P(f"v_or_b32 v{Wd_}, v12, v13")
P.wait("vd")
for d in range(8): P(f"v_dot2_f32_bf16 v{TMP+2*d}, v{KD+d}, v{Wc}, 0"); P(f"v_dot2_f32_bf16 v{TMP+2*d+1}, v{KD+d+1}, v{Wa}, 0")
for d in range(8): P(f"v_dot2_f32_bf16 v{TMP+2*d}, v{KD+d+1}, v{Wd_}, v{TMP+2*d}"); P(f"v_dot2_f32_bf16 v{TMP+2*d+1}, v{KD+d+2}, v{Wb}, v{TMP+2*d+1}")
for d in range(8): P(f"v_dot2_f32_bf16 v{TMP+2*d}, v{KD+d+2}, v{We}, v{TMP+2*d}")
for d in range(8): P(f"v_lshlrev_b32 v{TMP+16+2*d}, 16, v{VD+d}"); P(f"v_and_b32 v{TMP+17+2*d}, 0xffff0000, v{VD+d}")
for d in range(8): P(f"v_pk_mul_f32 {q(TMP+2*d,2)}, {q(TMP+2*d,2)}, {q(TMP+16+2*d,2)}")
for d in range(8): P(f"v_cvt_pk_bf16_f32 v{KD+d}, v{TMP+2*d}, v{TMP+2*d+1}")
P(f"s_lshl_b32 s{sT0}, s{sW}, 1"); P(f"v_xor_b32 v12, s{sT0}, v6"); P("v_lshlrev_b32 v12, 4, v12"); P(f"v_lshl_add_u32 v12, v{vLane}, 7, v12")
P(f"v_add_u32 v12, {TB}, v12"); P("v_xor_b32 v13, 16, v12")
P(f"ds_write_b128 v12, {q(KD)}", tag="tw"); P(f"ds_write_b128 v13, {q(KD+4)}", tag="tw")
P("v_xor_b32 v12, v5, v6"); P("v_lshlrev_b32 v12, 4, v12"); P("v_lshl_add_u32 v12, v5, 7, v12")
P(f"s_lshl_b32 s{sT0}, s{sW}, 11"); P(f"s_add_u32 s{sT0}, s{sT0}, {TB}"); P(f"v_add_u32 v12, s{sT0}, v12")
P("v_lshlrev_b32 v13, 4, v6"); P("v_lshl_add_u32 v13, v5, 12, v13")
P(f"s_lshl_b32 s{sT0}, s{sCB}, 2"); P(f"s_add_u32 s{sT0}, s{sT0}, s{sW}"); P(f"s_lshl_b32 s{sT0}, s{sT0}, 16")
P(f"s_lshl_b32 s{sT1}, s{sRR}, 7"); P(f"s_add_u32 s{sT0}, s{sT0}, s{sT1}"); P(f"s_add_u32 s{sT1}, s{sT0}, 32768")
P.wait("tw", ("w", 0), "dd"); P("s_barrier")
P.emit(stamp())

def w_reads(c, ks, js=(0, 1, 2, 3)):
    o = []
    for j in js:
        for h in (0, 1):
            o.append(I(f"ds_read_b64_tr_b16 {q(wfrag(ks, j)+2*h, 2)}, v{vWA+j} offset:{WR+16384*(c%3)+4096*ks+512*h}", tag=("wf", c, ks, j)))
    return o
def x_reads(c, ks):
    off = 4096 * (c % 3)
    return [I(f"ds_read_b128 {q(16*c+4*ks, 4, 'a')}, v{vXr+ks} offset:{off}", tag=("xf", c, ks)),
            I(f"ds_read_b128 {q(vXT+4*ks)}, v{vXr+ks} offset:{off}", tag=("xt", c, ks))]
def g1_mfma(c, ks, j):
    a = ACC[c // 7] + 16 * j; cc = c % 7
    src = "0" if (cc == 0 and ks == 0) else q(a, 16)
    needs = [("wf", c, ks, j | 1)] + ([("xf", c, ks)] if c < 7 else [])
    return I(f"v_mfma_f32_32x32x16_bf16 {q(a,16)}, {q(wfrag(ks,j))}, {q(16*cc+4*ks,4,'a')}, {src}", needs=needs)
def wd_where(u):
    if u in (8, 10, 12): return ("wr", {8: 11, 10: 12, 12: 13}[u] % 3)
    return ("ps", {0:1,1:2,2:0,3:1,4:2,5:0,6:1,7:2,9:0,11:1,13:2}[u])
def wd_loads(u):
    kind, s = wd_where(u); o = []
    for k in (0, 1):
        st = 2 * u + k; g, f2 = st // 14, st % 14
        m0 = f"s_add_u32 m0, s{sPm0}, {4096*s+2048*k}" if kind == "ps" else f"s_add_u32 m0, s{sWm0}, {WR+16384*s+2048*k}"
        o.append([I(f"s_mov_b32 s{sD1}, {(128*f2+64*g)*896}"), I(m0), I(f"buffer_load_dwordx4 v{vWdD}, {WD}, s{sD1} offen lds", tag=("wd", u))])
        o.append(I(f"buffer_load_dwordx4 v{vWdD+1}, {WD}, s{sD1} offen offset:1024 lds", tag=("wd", u)))
    return o
def wd_reg(st, mt): return (112 + 8 * st if st < 14 else 8 * (st - 14)) + 4 * mt
vWdR2 = vXd
def wd_reads(u):
    kind, s = wd_where(u); o = []
    for k in (0, 1):
        for mt in (0, 1):
            for h in (0, 1):
                ar, off = (vWdR, 4096 * s) if kind == "ps" else (vWdR2, 16384 * s)
                o.append(I(f"ds_read_b64_tr_b16 {q(wd_reg(2*u+k, mt)+2*h, 2, 'a')}, v{ar+mt} offset:{off+2048*k+1024*h}", needs=[("wd", u)], tag=("wdf", u)))
    return o
def silu_tile(g, j, packed, T):
    a = ACC[g] + 16 * j; o = []
    for p in range(4):
        g0, g1, u0, u1 = a+2*p, a+2*p+1, a+8+2*p, a+9+2*p
        t0, t1 = T + 4 + 2*(p % 2), T + 5 + 2*(p % 2)
        if packed:
            o += [I(f"v_mul_f32 v{t0}, v{vC1}, v{g0}"), I(f"v_mul_f32 v{t1}, v{vC1}, v{g1}"),
                  I(f"v_exp_f32 v{t0}, v{t0}"), I(f"v_exp_f32 v{t1}, v{t1}"),
                  I(f"v_pk_mul_f32 {q(u0,2)}, {q(g0,2)}, {q(u0,2)}"),
                  I(f"v_fma_f32 v{t0}, v{t0}, v{vC2}, v{vC2}"), I(f"v_fma_f32 v{t1}, v{t1}, v{vC2}, v{vC2}"),
                  I(f"v_rcp_f32 v{t0}, v{t0}"), I(f"v_rcp_f32 v{t1}, v{t1}"), I("s_nop 0"),
                  I(f"v_pk_mul_f32 {q(u0,2)}, {q(u0,2)}, {q(t0,2)}"),
                  I(f"v_cvt_pk_bf16_f32 v{T+p}, v{u0}, v{u1}")]
        else:
            o += [I(f"v_mul_f32 v{t0}, v{vC1}, v{g0}"), I(f"v_mul_f32 v{t1}, v{vC1}, v{g1}"),
                  I(f"v_exp_f32 v{t0}, v{t0}"), I(f"v_mul_f32 v{u0}, v{g0}, v{u0}"), I(f"v_exp_f32 v{t1}, v{t1}"),
                  I(f"v_fma_f32 v{t0}, v{t0}, v{vC2}, v{vC2}"), I(f"v_mul_f32 v{u1}, v{g1}, v{u1}"), I(f"v_rcp_f32 v{t0}, v{t0}"),
                  I(f"v_fma_f32 v{t1}, v{t1}, v{vC2}, v{vC2}"), I(f"v_rcp_f32 v{t1}, v{t1}"),
                  I(f"v_mul_f32 v{u0}, v{u0}, v{t0}"), I(f"v_mul_f32 v{u1}, v{u1}, v{t1}"),
                  I(f"v_cvt_pk_bf16_f32 v{T+p}, v{u0}, v{u1}")]
    o.append(I(f"buffer_store_dwordx4 {q(T)}, v{vL16}, {WS}, s{sHS+j} offen sc1", tag=("hst", g)))
    return o
def bf16r(d, s):
    return [I(f"v_cvt_pk_bf16_f32 v{d}, v{s}, v{s}"), I(f"v_and_b32 v{d}, 0xffff0000, v{d}")]
def stats_final():
    o = [I(f"v_add_f32 v{vS}, v{vS}, v{vS+1}"), I(f"v_add_f32 v{vQ}, v{vQ}, v{vQ+1}"),
         I(f"v_mov_b32 v{vS+1}, v{vS}"), I(f"v_mov_b32 v{vQ+1}, v{vQ}"),
         I(f"v_permlane32_swap_b32 v{vS}, v{vS+1}"), I(f"v_permlane32_swap_b32 v{vQ}, v{vQ+1}"),
         I(f"v_add_f32 v{vS}, v{vS}, v{vS+1}"), I(f"v_add_f32 v{vQ}, v{vQ}, v{vQ+1}"),
         I(f"v_mul_f32 v{vS}, 0x3b124925, v{vS}"), I(f"v_mul_f32 v{vQ}, 0x3b124925, v{vQ}"),
         I(f"v_fma_f32 v{vQ}, -v{vS}, v{vS}, v{vQ}"), I(f"v_max_f32 v{vQ}, 0, v{vQ}"),
         I(f"v_cvt_pk_bf16_f32 v{vBX}, -v{vS}, -v{vS}")]
    o += bf16r(vQ, vQ) + [I(f"v_add_f32 v{vQ}, 0x3727c5ac, v{vQ}")] + bf16r(vQ, vQ) + [I(f"v_sqrt_f32 v{vQ}, v{vQ}")] + bf16r(vQ, vQ)
    o += [I(f"v_rcp_f32 v2, v{vQ}"), I(f"v_mul_f32 v{vC2}, v{vQ}, v{vQ}"), I(f"v_and_b32 v3, 0xffff0000, v{vBX}"),
          I(f"v_mul_f32 v{vC1}, 0xbfb8aa3b, v2"), I("v_mul_f32 v3, v3, v2"),
          I(f"v_and_b32 v4, 31, v{vLane}"), I(f"v_lshlrev_b32 v4, 3, v4"), I(f"s_lshl_b32 s{sT0}, s{sW}, 8"), I(f"s_add_u32 s{sT0}, s{sT0}, {ST}"),
          I(f"v_add_u32 v4, s{sT0}, v4"), I("ds_write_b64 v4, v[2:3]", tag="stw")]
    return o
def cs_final():
    return [I(f"v_add_f32 v{vC}, v{vC}, v{vC+1}")] + bf16r(vC+1, vC) + [I(f"v_sub_f32 v{vC+1}, v{vC}, v{vC+1}"),
            I(f"v_cvt_pk_bf16_f32 v4, v{vC}, v{vC+1}"), I(f"ds_write_b32 v{vCS}, v4", tag="csw"),
            I(f"v_mov_b32 v{vC}, 0"), I(f"v_mov_b32 v{vC+1}, 0")]
def cs_reads(g):
    o = []
    for j in range(4):
        if j == 0: o.append(I(f"ds_read_b32 v{vAX}, v{vCS}", tag=("csr", g)))
        else: o.append([I(f"v_xor_b32 v4, {256*j}, v{vCS}"), I(f"ds_read_b32 v{vAX+4*j}, v4", tag=("csr", g))])
    return o
def ext_mfma(g, j):
    a = ACC[g] + 16 * j
    return I(f"v_mfma_f32_32x32x16_bf16 {q(a,16)}, {q(vAX+4*j)}, {q(vBX)}, {q(a,16)}", needs=[("csr", g)])

HR = [2, 8]
def h_loads():
    o = [[I(f"s_lshl_b32 s{sT0}, s{sCB}, 5"), I(f"s_add_u32 s{sT0}, s{sT0}, s{sRR}"), I(f"s_lshl_b32 s{sT0}, s{sT0}, 13"),
          I(f"s_lshl_b32 s{sT1}, s{sW}, 11"), I(f"s_add_u32 s{sT0}, s{sT0}, s{sT1}"),
          I(f"buffer_load_dwordx4 v[4:7], v{vL16}, {SK}, s{sT0} offen", tag="hr")],
         I(f"buffer_load_dwordx4 v[10:13], v{vL16}, {SK}, s{sT0} offen offset:1024", tag="hr"),
         I(f"buffer_load_dwordx2 v[8:9], v{vL16}, {SK}, s{sT0} offen offset:1016", tag="hr"),
         [I(f"s_and_b32 s{sT1}, s{sT1}, 2048"), I(f"s_sub_u32 s{sT0}, s{sT0}, s{sT1}"), I(f"s_sub_u32 s{sT1}, s{sT1}, 8"),
          I(f"v_add_u32 v3, s{sT1}, v{vL16}"), I(f"buffer_load_dwordx2 v[2:3], v3, {SK}, s{sT0} offen", tag="hr")]]
    return o
def h_build(T):
    o = [[I(f"s_lshr_b32 s{sT0}, s{sW}, 1"), I(f"s_mul_i32 s{sT0}, s{sT0}, 16640"), I(f"s_and_b32 s{sT1}, s{sW}, 1"), I(f"s_lshl_b32 s{sT1}, s{sT1}, 11")],
         [I(f"s_add_u32 s{sT0}, s{sT0}, s{sT1}"), I(f"s_add_u32 s{sT0}, s{sT0}, {HC+32}"), I(f"v_add_u32 v{T}, s{sT0}, v{vL16}")]]
    for un in (0, 1):
        R = HR[un]; off = 1024 * un
        o.append(I(f"ds_write_b128 v{T}, {q(R+2)} offset:{off}", needs=["hr"], tag="hw"))
        o += [I(f"v_alignbit_b32 v{T+2+d}, v{R+2+d}, v{R+1+d}, 16") for d in range(4)]
        o.append(I(f"ds_write_b128 v{T}, {q(T+2)} offset:{off+4160}", tag="hw"))
        o += [I(f"v_mov_b32 v{T+6+d}, v{R+1+d}") for d in range(4)]
        o.append(I(f"ds_write_b128 v{T}, {q(T+6)} offset:{off+8320}", tag="hw"))
        o += [I(f"v_alignbit_b32 v{T+2+d}, v{R+1+d}, v{R+d}, 16") for d in range(4)]
        o.append(I(f"ds_write_b128 v{T}, {q(T+2)} offset:{off+12480}", tag="hw"))
    o += [[I(f"v_lshrrev_b32 v{T}, 3, v{vLane}"), I(f"v_mul_u32_u24 v{T}, 4160, v{T}"), I(f"v_and_b32 v{T+1}, 7, v{vLane}")],
          [I(f"v_lshl_add_u32 v{T}, v{T+1}, 2, v{T}"), I(f"v_add_u32 v{T}, {HC}, v{T}"), I(f"ds_write_b32 v{T}, v{vBX+1}", tag="hw")]]
    return o
def u_loads():
    return [[I(f"s_lshl_b32 s{sT0}, s{sCB}, 5"), I(f"s_add_u32 s{sT0}, s{sT0}, s{sRR}"), I(f"s_lshl_b32 s{sT0}, s{sT0}, 13"),
             I(f"s_lshl_b32 s{sT1}, s{sW}, 11"), I(f"s_add_u32 s{sT0}, s{sT0}, s{sT1}")],
            [I(f"s_lshr_b32 s{sT2}, s{sW}, 1"), I(f"s_lshl_b32 s{sT2}, s{sT2}, 9"), I(f"s_add_u32 s{sT1}, s{sT1}, s{sT2}"),
             I(f"s_add_u32 m0, s{sT1}, {UB+512}"), I(f"buffer_load_dwordx4 v{vL16}, {WS}, s{sT0} offen sc1 lds", tag="u")],
            I(f"buffer_load_dwordx4 v{vL16}, {WS}, s{sT0} offen offset:1024 sc1 lds", tag="u")]

P.emit(x_reads(0, 0)); P.emit(w_reads(0, 0))
P(f"ds_read_b128 {q(192)}, v12", tag="tr"); P(f"ds_read_b128 {q(196)}, v12 offset:1024", tag="tr")
pend = [I(f"buffer_store_dwordx4 {q(192)}, v13, {WS}, s{sT0} offen sc1", needs=["tr"], tag="kst"),
        I(f"buffer_store_dwordx4 {q(196)}, v13, {WS}, s{sT1} offen sc1", tag="kst")]
e0 = []
for j in range(4): e0 += silu_tile(0, j, False, vXT + 8 * (j % 2))
E0_CH = [7, 8, 9, 10, 11, 12]
for c in range(14):
    g = c // 7; last = (c % 7 == 6)
    slots = [[] for _ in range(12)]
    for ks in range(3):
        rd = (x_reads(c, ks+1) if c < 7 else []) + w_reads(c, ks+1)
        spread(slots, rd, 4*ks, 4*ks+4)
    spread(slots, pend, 0, 12) if pend else None
    pend = []
    if c >= 7: spread(slots, wd_reads(c-7), 1, 11)
    if c in E0_CH:
        k = E0_CH.index(c); n = len(e0)
        part = e0[k*n//len(E0_CH):(k+1)*n//len(E0_CH)]
        tail_part = part[len(part)*3//4:]; spread(slots, part[:len(part)*3//4], 2 if c == 7 else 0, 12)
    else: tail_part = []
    if c == 5: spread(slots, h_build(ACC[1]+16), 0, 12)
    interleave([g1_mfma(c, ks, j) for ks in range(3) for j in range(4)], slots)
    P.wait(("wf", c, 3, 3), *([("wdf", c-7)] if c >= 7 else []))
    if c < 7:
        for i in range(16):
            P(f"v_dot2c_f32_bf16 v{vS+i%2}, s{sONE}, v{vXT+i}"); P(f"v_dot2c_f32_bf16 v{vQ+i%2}, v{vXT+i}, v{vXT+i}")
    for i in range(16): P(f"v_dot2c_f32_bf16 v{vC+i%2}, s{sONE}, v{vF0+i}")
    if last: P.emit(cs_final())
    P.emit(g1_mfma(c, 3, 0))
    if c == 6: P.emit(stats_final())
    needs = []
    if c < 13: needs.append(("w", c+1))
    if last: needs.append("csw")
    if c == 2: needs.append("kst")
    if c == 6: needs += ["stw", "hw"]
    if c == 13: needs += [("hst", 0), "u"]
    P.wait(*needs); P("s_barrier")
    if c in (6, 13) or FINE: P.emit(stamp())
    slots = [[] for _ in range(3)]
    nxt = []
    if last: nxt += cs_reads(g)
    if c < 13: nxt += (x_reads(c+1, 0) if c+1 < 7 else []) + w_reads(c+1, 0)
    P.emit(nxt[:3]); spread(slots, nxt[3:], 0, 3) if nxt[3:] else None
    if tail_part: spread(slots, tail_part, 0, 3)
    interleave([g1_mfma(c, 3, j) for j in (1, 2, 3)], slots)
    if c + 3 < 7: pend += x_loads(c+3)
    if c + 3 < 14: pend += w_loads(c+3)
    if 4 <= c <= 10: pend += wd_loads(c-4)
    if c == 11: pend += wd_loads(7) + wd_loads(8)
    if c == 12: pend += wd_loads(9) + wd_loads(10)
    if c == 13: pend += wd_loads(11) + wd_loads(12)
    if c == 2: pend = [flag_store(1)] + h_loads() + pend
    if c == 4:
        pend += [[I(f"s_sub_u32 s{sT0}, s{sWm0}, s{sPm0}"), I(f"v_add_u32 v{vWdR2}, s{sT0}, v{vWdR}"), I(f"v_add_u32 v{vWdR2+1}, s{sT0}, v{vWdR+1}")]]
    if c == 8: pend = [[I(f"v_cmp_gt_u32 vcc, 32, v{vLane}"), I(f"v_cndmask_b32 v{vFlag}, v{vP2}, v{vP1}, vcc"), poll_issue(vFlag, 1, "p1")],
                      [I(f"v_lshlrev_b32 v{vP1}, 7, v{vP1}"), I(f"v_lshlrev_b32 v{vP2}, 7, v{vP2}")],
                      [I(f"v_add_u32 v{vP1}, {WS_FLAG}, v{vP1}"), I(f"v_add_u32 v{vP2}, {WS_FLAG}, v{vP2}")]] + pend
    if c == 10: pend = [poll_check(vFlag, 1, "p1")] + u_loads() + pend
    if c == 13: pend = [flag_store(2)] + pend
    if last:
        sl = [[] for _ in range(4)]
        if c == 13: spread(sl, pend[:5], 0, 4); pend = pend[5:]
        interleave([ext_mfma(g, j) for j in range(4)], sl)

CACC = 56; CBUF = [128, 192]
def conv_reads(rr):
    b = CBUF[rr % 2]; o = []
    for p in range(8):
        o.append(I(f"ds_read_b128 {q(b+32+4*p)}, v{vCB} offset:{512*p+64*(3-rr)}", tag=("cb", rr, p)))
        for h in (0, 1):
            o.append(I(f"ds_read_b64_tr_b16 {q(b+4*p+2*h,2)}, v{vCA} offset:{64*rr+512*p+8*(1-h)}", tag=("ca", rr, p)))
    return o
for j in range(4): P(f"s_add_u32 s{sHS+j}, s{sHS+j}, 4096")
e1 = []
for j in range(4): e1 += silu_tile(1, j, True, vXT + 8 * (j % 2))
slots = [[] for _ in e1]
n = len(e1)
spread(slots, pend, 0, n//8); pend = []
spread(slots, wd_reads(7) + wd_reads(8) + [W(("wdf", 7))] + wd_loads(13) + wd_reads(9) + wd_reads(10), n//8, n*5//8)
spread(slots, [poll_issue(vP2, 2, "p2a")], n-2, n-1)
spread(slots, conv_reads(0), n*5//8, n-2)
interleave(e1, slots)
P.emit(stamp())

vHL = vXr
def hreg(i):
    i %= 32
    if i < 8: return q(224 + 4*i, 4, 'a')
    if i < 16: return q(vXT + 4*(i-8))
    return q(192 + 4*(i-16))
HORD = [(st, nt) for st in range(28) for nt in (0, 1)]
def h_load(i):
    st, nt = HORD[i]; g, f2 = st // 14, st % 14
    ld = I(f"buffer_load_dwordx4 {hreg(i)}, v{vHL+nt}, {WS}, s{sD0} offen sc1", tag=("h", i))
    return [I(f"s_mov_b32 s{sD0}, {8192*f2+4096*g}"), ld] if nt == 0 else ld
hl_setup = [I(f"s_mul_i32 s{sT0}, s{sRR}, {2*114688}"), I(f"s_lshl_b32 s{sT1}, s{sW}, 10"), I(f"s_add_u32 s{sT0}, s{sT0}, s{sT1}"),
            I(f"s_add_u32 s{sT0}, s{sT0}, {WS_H}"), I(f"v_add_u32 v{vHL}, s{sT0}, v{vL16}"), I(f"v_add_u32 v{vHL+1}, 114688, v{vHL}")]
for rr in range(4):
    b = CBUF[rr % 2]; mf = []
    for qq in range(8):
        for p in range(qq + 1):
            a = CACC + 4*qq
            src = "0" if (rr == 0 and p == 0) else q(a)
            mf.append(I(f"v_mfma_f32_16x16x32_bf16 {q(a)}, {q(b+4*p)}, {q(b+32+4*(qq-p))}, {src}", needs=[("ca", rr, qq)]))
    slots = [[] for _ in mf]
    if rr < 3: spread(slots, conv_reads(rr+1), 0, 34)
    if rr == 0: spread(slots, wd_reads(11) + wd_reads(12) + hl_setup, 2, 36)
    if rr == 1: spread(slots, wd_reads(13) + [poll_check(vP2, 2, "p2a")] + [h_load(i) for i in range(6)], 2, 36)
    if rr == 2: spread(slots, [[W(("hst", 1)), I("s_barrier")] + flag_store(3)] + [h_load(i) for i in range(6, 12)], 0, 36)
    if rr == 3: spread(slots, [h_load(i) for i in range(12, 16)], 0, 24)
    interleave(mf, slots)
P.emit(stamp())
xs = [I(f"v_lshrrev_b32 v4, 4, v{vLane}"), I(f"v_lshl_add_u32 v5, v4, 2, v{vLane}"), I("v_and_b32 v5, 15, v5"), I("v_lshl_add_u32 v5, v4, 4, v5"),
      I(f"s_lshl_b32 s{sT0}, s{sW}, 13"), I(f"v_lshl_add_u32 v8, v5, 4, s{sT0}"),
      I(f"v_and_b32 v4, 3, v{vLane}"), I(f"v_lshrrev_b32 v5, 2, v{vLane}"), I("v_lshl_add_u32 v5, v4, 2, v5"), I("v_and_b32 v5, 15, v5"), I("v_lshl_add_u32 v5, v4, 4, v5"),
      I(f"s_lshl_b32 s{sT0}, s{sW}, 11"), I(f"v_lshl_add_u32 v3, v5, 4, s{sT0}")]
P.emit(xs)
for qq in range(8):
    P(f"ds_write_b128 v8, {q(CACC+4*qq)} offset:{WR+1024*qq}", tag="xw")
    P.emit(h_load(16 + qq))
P(f"s_lshl_b32 s{sT0}, s{sW}, 10"); P(f"s_add_u32 s{sT0}, s{sT0}, {UB+512}"); P(f"v_lshl_add_u32 v7, v{vLane}, 3, s{sT0}")
P(f"s_lshl_b32 s{sT0}, s{sCB}, 5"); P(f"s_add_u32 s{sT0}, s{sT0}, s{sRR}"); P(f"s_lshl_b32 s{sT0}, s{sT0}, 13")
P(f"s_lshl_b32 s{sT1}, s{sW}, 11"); P(f"s_add_u32 s{sT0}, s{sT0}, s{sT1}"); P(f"s_add_u32 s{sT0}, s{sT0}, {WS_Y}")
P(f"s_and_b32 s{sD1}, s{sDD}, 0xffff"); P(f"s_lshl_b32 s{sD2}, s{sDD}, 16"); P(f"s_lshr_b32 s{sD3}, s{sDD}, 16"); P(f"s_and_b32 s{sDD}, s{sDD}, 0xffff0000")
UR = 88
for e in (0, 1):
    for ch in (0, 1): P(f"ds_read_b64 {q(UR+4*e+2*ch,2)}, v7 offset:{4608*ch+512*e}", tag="ur")
P.wait("xw"); P("s_barrier")
for e in (0, 1):
    for w2 in range(4): P(f"ds_read_b128 {q(CACC+16*e+4*w2)}, v3 offset:{WR+8192*w2+1024*e}", tag=("xr", e))
for i in range(24, 28): P.emit(h_load(i))
P.emit(poll_issue(vP2, 3, "p2b"))
for e in (0, 1):
    b = CACC + 16 * e
    P.wait(("xr", e))
    for ch in (0, 1):
        for jj in (0, 2): P(f"v_pk_add_f32 {q(b+8*ch+jj,2)}, {q(b+8*ch+jj,2)}, {q(b+8*ch+4+jj,2)}")
    for ch in (0, 1):
        for jj in range(4):
            sd = [[sD1, sD2], [sD3, sDD]][ch][jj & 1]
            P(f"v_dot2c_f32_bf16 v{b+8*ch+jj}, s{sd}, v{UR+4*e+2*ch+(jj>>1)}")
    for jj in range(4): P(f"v_cvt_pk_bf16_f32 v{b+4+jj}, v{b+jj}, v{b+8+jj}")
    P(f"buffer_store_dwordx4 {q(b+4)}, v{vL16}, {WS}, s{sT0} offen offset:{1024*e} sc1", tag="yst")
P.emit(stamp())

GA = 128
def g2_mfma(i, mt):
    st, nt = HORD[i]; a = GA + 32*nt + 16*mt
    src = "0" if st == 0 else q(a, 16)
    return I(f"v_mfma_f32_32x32x16_bf16 {q(a,16)}, {q(wd_reg(st, mt),4,'a')}, {hreg(i)}, {src}", needs=[("h", i)])
mf = [g2_mfma(i, mt) for i in range(56) for mt in (0, 1)]
slots = [[] for _ in mf]
H1_AT = 12
slots[H1_AT] += poll_check(vP2, 3, "p2b")
for i in range(28, 56):
    s = H1_AT + 1 + 2 * (i - 28)
    assert i < 32 or s > 2 * (i - 32) + 1
    x = h_load(i); slots[s] += x if isinstance(x, list) else [x]
slots[30] += [W("yst"), I("s_barrier")] + flag_store(4)
XR = 56; vFA = 2
fin_setup = [I(f"v_lshrrev_b32 v5, 3, v{vLane}"), I(f"v_and_b32 v6, 7, v{vLane}"),
    I("v_mul_u32_u24 v8, 896, v5"), I("v_lshl_add_u32 v8, v6, 4, v8"),
    I(f"s_lshl_b32 s{sT0}, s{sRR}, 3"), I(f"s_add_u32 s{sT0}, s{sT0}, s{sW}"), I(f"s_mul_i32 s{sT0}, s{sT0}, {8*896}"),
    I(f"s_lshl_b32 s{sT1}, s{sCB}, 7"), I(f"s_add_u32 s{sD2}, s{sT0}, s{sT1}"), I(f"s_add_u32 s{sD3}, s{sD2}, {32*896}"),
    I(f"buffer_load_dwordx4 {q(XR)}, v8, {X}, s{sD2} offen", tag="xt"), I(f"buffer_load_dwordx4 {q(XR+4)}, v8, {X}, s{sD3} offen", tag="xt"),
    I("v_lshlrev_b32 v9, 1, v6"), I("v_xor_b32 v9, v9, v5"), I("v_lshlrev_b32 v9, 4, v9"), I("v_lshl_add_u32 v9, v5, 8, v9"),
    I(f"s_lshl_b32 s{sT0}, s{sW}, 11"), I(f"v_add_u32 v9, s{sT0}, v9"), I("v_xor_b32 v10, 16, v9"),
    I(f"v_lshrrev_b32 v11, 5, v{vLane}"), I(f"s_lshl_b32 s{sT0}, s{sW}, 1"), I(f"v_add_u32 v11, s{sT0}, v11"), I("v_xor_b32 v11, v11, v6"),
    I("v_lshlrev_b32 v11, 4, v11"), I("v_lshl_add_u32 v11, v6, 10, v11"), I("v_and_b32 v4, 3, v5"), I("v_lshl_add_u32 v11, v4, 2, v11"), I(f"v_add_u32 v11, {YT}, v11"),
    I(f"s_and_b32 s{sT0}, s{sRR}, 1"), I(f"s_lshl_b32 s{sT0}, s{sT0}, 3"), I(f"s_add_u32 s{sT0}, s{sT0}, s{sW}"), I(f"s_lshl_b32 s{sT0}, s{sT0}, 6"),
    I(f"s_add_u32 s{sT0}, s{sT0}, {ST}"), I(f"v_lshl_add_u32 v12, v5, 3, s{sT0}"),
    I(f"v_lshrrev_b32 v4, 5, v{vLane}"), I("v_xor_b32 v4, v4, v6"), I("v_lshlrev_b32 v4, 4, v4"), I(f"v_and_b32 v13, 31, v{vLane}"),
    I("v_lshl_add_u32 v4, v13, 8, v4"), I(f"s_lshl_b32 s{sT0}, s{sW}, 13"), I(f"v_add_u32 v{vWA}, s{sT0}, v4"),
    I(f"v_xor_b32 v{vWA+1}, 32, v{vWA}"), I(f"v_xor_b32 v{vWA+2}, 64, v{vWA}"), I(f"v_xor_b32 v{vWA+3}, 96, v{vWA}"),
    I(f"v_and_b32 v13, 15, v{vLane}"), I(f"s_lshl_b32 s{sT0}, s{sW}, 1"), I(f"v_xor_b32 v13, s{sT0}, v13"), I("v_lshlrev_b32 v13, 4, v13"),
    I(f"v_lshrrev_b32 v3, 4, v{vLane}"), I("v_lshl_add_u32 v3, v3, 13, v13"), I("v_xor_b32 v4, 16, v3"), I(f"v_add_u32 v4, {32768-1024}, v4"),
    I(f"s_lshl_b32 s{sT0}, s{sCB}, 2"), I(f"s_add_u32 s{sT0}, s{sT0}, s{sW}"), I(f"s_lshl_b32 s{sT0}, s{sT0}, 16"),
    I(f"s_lshl_b32 s{sT1}, s{sRR}, 8"), I(f"s_add_u32 s{sT0}, s{sT0}, s{sT1}"), I(f"s_add_u32 s{sD1}, s{sT0}, {WS_Y}"),
    I(f"s_lshl_b32 s{sT1}, s{sW}, 11"), I(f"s_add_u32 m0, s{sT1}, {YT}")]
spread(slots, fin_setup, 32, 68)
slots[70] += [poll_issue(vP1, 4, "p3")]
slots[96] += poll_check(vP1, 4, "p3") + [I(f"buffer_load_dwordx4 v3, {WS}, s{sD1} offen sc1 lds", tag="yt"),
                                        I(f"buffer_load_dwordx4 v4, {WS}, s{sD1} offen offset:1024 sc1 lds", tag="yt")]
interleave(mf, slots)
P.emit(stamp())
for nt in (0, 1):
    for mt in (0, 1):
        for i in range(4): P(f"ds_write_b128 v{vWA+i}, {q(GA+32*nt+16*mt+4*i)} offset:{32768*nt+128*mt}", tag="rw")
P.wait("rw", "yt", "xt"); P("s_barrier")
RB = [128, 192]; YR = 64; SR = 72
for nt in (0, 1):
    for jj in range(4): P(f"ds_read_b32 v{YR+4*nt+jj}, v11 offset:{256*jj+128*nt}", tag=("yr", nt))
    P(f"ds_read_b64 {q(SR+2*nt,2)}, v12 offset:{256*nt}", tag=("yr", nt))
    for w2 in range(4):
        for e in (0, 1): P(f"ds_read_b128 {q(RB[nt]+8*w2+4*e)}, v{9+e} offset:{32768*nt+8192*w2}", tag=("rr", nt))
    b = RB[nt]; xf = b + 32; yf = b + 40; t = b + 48
    for d in range(4):
        P(f"v_lshlrev_b32 v{xf+2*d}, 16, v{XR+4*nt+d}"); P(f"v_and_b32 v{xf+2*d+1}, 0xffff0000, v{XR+4*nt+d}")
    P.wait(("yr", nt))
    for d in range(4):
        P(f"v_lshlrev_b32 v{yf+2*d}, 16, v{YR+4*nt+d}"); P(f"v_and_b32 v{yf+2*d+1}, 0xffff0000, v{YR+4*nt+d}")
    for d in range(8): P(f"v_fma_f32 v{t+d}, v{xf+d}, v{SR+2*nt}, v{SR+2*nt+1}")
    for d in range(0, 8, 2): P(f"v_pk_mul_f32 {q(yf+d,2)}, {q(yf+d,2)}, {q(t+d,2)}")
for nt in (0, 1):
    b = RB[nt]; xf = b + 32; yf = b + 40; t = b + 48
    P.wait(("rr", nt))
    for d in range(0, 8, 2): P(f"v_pk_add_f32 {q(b+d,2)}, {q(b+d,2)}, {q(b+8+d,2)}"); P(f"v_pk_add_f32 {q(b+16+d,2)}, {q(b+16+d,2)}, {q(b+24+d,2)}")
    for d in range(0, 8, 2): P(f"v_pk_add_f32 {q(b+d,2)}, {q(b+d,2)}, {q(b+16+d,2)}")
    for d in range(8): P(f"v_mul_f32 v{t+d}, 0xbfb8aa3b, v{b+d}")
    for d in range(8): P(f"v_exp_f32 v{t+d}, v{t+d}")
    for d in range(0, 8, 2): P(f"v_pk_mul_f32 {q(yf+d,2)}, {q(yf+d,2)}, {q(b+d,2)}")
    for d in range(8): P(f"v_add_f32 v{t+d}, 1.0, v{t+d}")
    for d in range(8): P(f"v_rcp_f32 v{t+d}, v{t+d}")
    for d in range(0, 8, 2): P(f"v_pk_fma_f32 {q(xf+d,2)}, {q(yf+d,2)}, {q(t+d,2)}, {q(xf+d,2)}")
    for d in range(4): P(f"v_cvt_pk_bf16_f32 v{b+d}, v{xf+2*d}, v{xf+2*d+1}")
    P(f"buffer_store_dwordx4 {q(b)}, v8, {OUT}, s{[sD2, sD3][nt]} offen", tag="ost")
if HOLD or PROBE: P.emit(stamp())
if PROBE:
    if len(PROBE) > 1: P(f"s_cmp_lg_u32 s2, {PROBE[1]}"); P("s_cbranch_scc1 Lend")
    P("s_lshl_b32 s28, s28, 2"); P("s_add_u32 s28, s28, 3000")
    P("Lhold:"); P("s_memrealtime s[16:17]", tag="stp"); P(f"s_sub_u32 s16, s16, s{sSTP}", needs=["stp"]); P("s_cmp_lt_u32 s16, s28"); P("s_cbranch_scc1 Lhold")
if STAMP:
    P.wait_all(); P.emit(stamp())
    P("s_memrealtime s[16:17]", tag="stp"); P("v_mov_b32 v14, s16", needs=["stp"]); P(f"buffer_store_dword v14, v15, {WS}, s{sSTP} offen offset:252", tag="stpst")
P("Lend:"); P("s_endpgm")

ins, added = pad_hazards(P.out)
for i in ins: i.t = i.t.replace("NLINES", "200")
tmp = ins + [I(l) for s in slow for l in s.splitlines()]
total, mis = align8(tmp)
nl = min(255, (total - 64) // 128)
assert nl > 64
body = "\n".join(("" if i.t.endswith(":") else "    ") + i.t.replace("v_min_u32 v2, 200", f"v_min_u32 v2, {nl}") for i in tmp)
hdr = open(f"cdna_kernels/{NAME}.s.ref").read().split("; Override launch")[0]
txt = hdr + f"""; @launch grid=({NWG},1,1) block=(256,1,1) lds={LDS_SIZE}
; generated by gen/gen.py (hand-written schedule): one persistent launch, 224 workgroups
;   kv = shiftconv(k)*v -> GEMM1 (gate/up, LayerNorm folded in) -> Toeplitz-MFMA long conv -> GEMM2 + output gate
.amdgcn_target "amdgcn-amd-amdhsa--gfx950"
.text
.globl {NAME}_kernel
.p2align 8
.type {NAME}_kernel,@function
{NAME}_kernel:
{body}
.section .rodata,"a"
.p2align 6
.amdhsa_kernel {NAME}_kernel
  .amdhsa_next_free_vgpr 512
  .amdhsa_next_free_sgpr 102
  .amdhsa_accum_offset 256
  .amdhsa_group_segment_fixed_size 0
  .amdhsa_kernarg_size 104
  .amdhsa_user_sgpr_count 2
  .amdhsa_user_sgpr_kernarg_segment_ptr 1
  .amdhsa_system_sgpr_workgroup_id_x 1
  .amdhsa_float_denorm_mode_32 3
.end_amdhsa_kernel
"""
open(OUTP, "w").write(txt)
print(f"{OUTP}: {len(tmp)} lines, {total} bytes, nop states added {added}, misaligned 8B {mis}")
```

```python
import re, subprocess, os

class I:
    __slots__ = ("t", "needs", "tag", "kind", "w", "r", "size")
    def __init__(self, t, needs=(), tag=None):
        self.t = t.strip(); self.needs = list(needs); self.tag = tag
        self.kind = kind_of(self.t); self.w, self.r = rw_sets(self.t, self.kind); self.size = None

def kind_of(t):
    op = t.split()[0]
    if op.endswith(":") or op.startswith(";") or op.startswith("."): return "meta"
    if op.startswith("v_mfma"): return "mfma"
    if op.startswith("ds_"): return "ds"
    if op.startswith(("buffer_", "global_")): return "vm"
    if op.startswith(("s_load", "s_memtime", "s_memrealtime")): return "smem"
    if op.startswith("v_"): return "valu"
    if op.startswith("s_"): return "salu"
    raise ValueError(t)

_reg = re.compile(r"\b([vas])(?:\[(\d+):(\d+)\]|(\d+))(?![\w])")
def regs_in(s):
    out = set()
    for m in _reg.finditer(s):
        k = m.group(1)
        if m.group(2) is not None:
            for i in range(int(m.group(2)), int(m.group(3)) + 1): out.add(k + str(i))
        else: out.add(k + m.group(4))
    for sp in ("vcc", "m0", "exec"):
        if re.search(r"\b" + sp + r"\b", s): out.add(sp)
    return out

TRANS = ("v_exp_", "v_log_", "v_rcp_", "v_rsq_", "v_sqrt_", "v_sin_", "v_cos_")
def rw_sets(t, kind):
    if kind == "meta": return set(), set()
    parts = t.split(None, 1); op = parts[0]
    ops = [o.strip() for o in parts[1].split(",")] if len(parts) > 1 else []
    R = [regs_in(o) for o in ops]
    allr = set().union(*R) if R else set()
    if kind == "mfma": return R[0], set().union(*R[1:])
    if kind == "ds":
        if op.startswith("ds_read"): return R[0], set().union(*R[1:])
        return set(), allr
    if kind == "vm":
        if "_load" in op:
            if re.search(r"\blds\b", t): return set(), allr | {"m0"}
            return R[0], set().union(*R[1:])
        return set(), allr
    if kind == "smem": return R[0], set().union(*R[1:]) if len(R) > 1 else set()
    if kind == "valu":
        if op.startswith("v_nop"): return set(), set()
        if "permlane" in op and "swap" in op: return allr, allr
        w = set(R[0]); r = set().union(*R[1:]) if len(R) > 1 else set()
        if op.startswith(("v_add_co", "v_addc_co", "v_sub_co")): w |= R[1]; r = set().union(*R[2:])
        if op.startswith(("v_fmac", "v_dot2c")): r |= R[0]
        return w, r
    if kind == "salu":
        if op.startswith(("s_cmp", "s_waitcnt", "s_barrier", "s_nop", "s_cbranch", "s_branch", "s_endpgm", "s_sleep", "s_setprio")):
            return set(), allr
        w = set(R[0]); r = set().union(*R[1:]) if len(R) > 1 else set()
        if "saveexec" in op: w.add("exec")
        return w, r

def mfma_passes(t):
    if "32x32x16" in t: return 8
    if "16x16x32" in t: return 4
    raise ValueError(t)

def srcC(t):
    return regs_in(t.split(",")[3])

def need_states(p, c):
    n = 0
    pop = p.t.split()[0]; cop = c.t.split()[0]
    vw = {x for x in p.w if x[0] in "va" and x not in ("vcc",)}
    sw = {x for x in p.w if x[0] == "s" or x == "vcc"}
    if p.kind == "valu":
        dot = pop.startswith("v_dot")
        if c.kind == "mfma" and vw & c.r: n = max(n, 3 if dot else 2)
        if c.kind == "valu":
            if pop.startswith(TRANS) and vw & c.r: n = max(n, 1)
            if ("permlane" in cop or "dpp" in c.t) and vw & c.r: n = max(n, 2)
            if cop.startswith(("v_readlane", "v_readfirstlane")) and vw & c.r: n = max(n, 1)
            if sw & c.r: n = max(n, 2)
            if ("sdwa" in pop or "op_sel" in p.t) and vw & (c.r | c.w): n = max(n, 1)
        if dot and vw & (c.r | c.w):
            same = (cop == pop)
            if same:
                ops = [o.strip() for o in c.t.split(None, 1)[1].split(",")]
                ab = regs_in(ops[1]) | regs_in(ops[2])
                if vw & ab: n = max(n, 3)
            else: n = max(n, 3)
        if c.kind == "vm" and sw & c.r: n = max(n, 5)
        if c.kind == "salu" and sw & c.r: n = max(n, 1)
        if "exec" in p.w: n = max(n, 5) if c.kind in ("valu", "mfma") else n
    if p.kind == "salu":
        if "m0" in p.w and c.kind == "vm" and "m0" in c.r: n = max(n, 1)
    if p.kind == "mfma":
        ps = mfma_passes(p.t); big = {8: 12, 4: 8}[ps]
        if c.kind == "mfma":
            cc = srcC(c.t); ab = c.r - cc if not (cc & regs_in(",".join(c.t.split(",")[1:3]))) else c.r
            if p.w & regs_in(",".join(c.t.split(",")[1:3])): n = max(n, big)
            if p.w & cc:
                if cc == p.w and mfma_passes(c.t) == ps: pass
                else: n = max(n, {8: 10, 4: 6}[ps])
            elif p.w & c.w: n = max(n, big)
        elif c.kind in ("valu", "vm", "ds"):
            if p.w & (c.r | c.w): n = max(n, big)
            if c.kind == "valu" and srcC(p.t) & c.w: n = max(n, {8: 7, 4: 3}[ps])
    if p.kind in ("vm", "ds") and ("store" in pop or "write" in pop) and ("x4" in pop or "x3" in pop or "b128" in pop):
        if c.kind in ("valu", "mfma") and (p.r & c.w): n = max(n, 2)
        elif c.kind in ("vm", "ds") and (p.r & c.w): n = max(n, 1)
    return n

class Prog:
    def __init__(self):
        self.out = []; self.vm = []; self.lg = []
        self.known = set(); self.smem_out = False
    def _wait(self, needs):
        vn = None; ln = None
        for tg in needs:
            if tg not in self.known: raise KeyError("unknown tag " + str(tg))
            if tg in self.vm:
                last = len(self.vm) - 1 - self.vm[::-1].index(tg)
                n = len(self.vm) - 1 - last; vn = n if vn is None else min(vn, n)
            if tg in self.lg:
                last = len(self.lg) - 1 - self.lg[::-1].index(tg)
                n = len(self.lg) - 1 - last; ln = n if ln is None else min(ln, n)
        if ln is not None and self.smem_out: ln = 0
        if vn is None and ln is None: return
        s = "s_waitcnt"
        if vn is not None:
            vn = min(vn, 63); s += f" vmcnt({vn})"; self.vm = self.vm[len(self.vm) - vn:] if vn else []
        if ln is not None:
            ln = min(ln, 15); s += f" lgkmcnt({ln})"; self.lg = self.lg[len(self.lg) - ln:] if ln else []
            if ln == 0: self.smem_out = False
        self.out.append(I(s))
    def emit(self, ins):
        if isinstance(ins, str): ins = I(ins)
        if isinstance(ins, (list, tuple)):
            for x in ins: self.emit(x)
            return
        self._wait(ins.needs)
        if ins.t == "; wait": return
        self.out.append(ins)
        if ins.kind == "vm": self.vm.append(ins.tag); self.known.add(ins.tag)
        elif ins.kind == "ds": self.lg.append(ins.tag); self.known.add(ins.tag)
        elif ins.kind == "smem": self.lg.append(ins.tag); self.known.add(ins.tag); self.smem_out = True
    def __call__(self, t, needs=(), tag=None): self.emit(I(t, needs, tag))
    def wait(self, *needs): self._wait(needs)
    def wait_all(self, vm=True, lg=True):
        s = "s_waitcnt" + (" vmcnt(0)" if vm else "") + (" lgkmcnt(0)" if lg else "")
        self.out.append(I(s))
        if vm: self.vm = []
        if lg: self.lg = []; self.smem_out = False

def W(*needs): return I("; wait", needs)

def states_of(i):
    if i.kind == "meta": return 0
    if i.t.startswith("s_nop"): return int(i.t.split()[1]) + 1
    return 1

def pad_hazards(ins):
    out = []; added = 0
    for c in ins:
        if c.kind != "meta":
            dist = 0; need = 0
            for p in reversed(out):
                if dist >= 12: break
                if p.kind != "meta":
                    n = need_states(p, c)
                    if n - dist > need: need = n - dist
                dist += states_of(p)
            if need > 0:
                out.append(I(f"s_nop {need-1}")); added += need
        out.append(c)
    return out, added

def sizes(ins):
    txt = ".amdgcn_target \"amdgcn-amd-amdhsa--gfx950\"\n.text\n"
    for k, i in enumerate(ins): txt += i.t + "\n"
    open("_sz.s", "w").write(txt)
    r = subprocess.run(["llvm-mc", "-triple=amdgcn-amd-amdhsa", "-mcpu=gfx950", "-show-encoding", "_sz.s"], capture_output=True, text=True)
    if r.returncode: print(r.stderr[:3000]); raise SystemExit(1)
    enc = [l for l in r.stdout.splitlines() if "encoding:" in l]
    real = [i for i in ins if i.kind != "meta"]
    assert len(enc) == len(real), (len(enc), len(real))
    for i, l in zip(real, enc): i.size = l.split("encoding:")[1].count(",") + 1
    for i in ins:
        if i.kind == "meta": i.size = 0

NO_E64 = ("v_readfirstlane", "v_permlane", "v_nop", "v_accvgpr_mov", "v_fmaak", "v_fmamk")
def promotable(i):
    if i.kind != "valu" or i.size != 4: return False
    op = i.t.split()[0]
    return not op.startswith(NO_E64) and not op.endswith("_e32")

def align8(ins, nop_cost=1e9):
    sizes(ins)
    INF = 1e18; cost = [0.0, INF]; back = []
    for i in ins:
        nc = [INF, INF]; bk = [None, None]
        def upd(p, c, prev, act):
            if c < nc[p]: nc[p] = c; bk[p] = (prev, act)
        for p in (0, 1):
            if cost[p] >= INF: continue
            if i.size == 0: upd(p, cost[p], p, 0)
            elif i.size == 8:
                upd(p, cost[p] + p, p, 0)
                if p: upd(0, cost[p] + nop_cost, p, 2)
            else:
                upd(p ^ 1, cost[p], p, 0)
                if promotable(i): upd(p, cost[p] + p + 0.01, p, 1)
        cost = nc; back.append(bk)
    p = 0 if cost[0] <= cost[1] else 1
    acts = []
    for bk in reversed(back): p, act = bk[p]; acts.append(act)
    acts.reverse(); out = []
    for i, act in zip(ins, acts):
        if act == 1:
            op, rest = i.t.split(None, 1); i.t = op + "_e64 " + rest; i.size = 8
        if act == 2:
            n = I("s_nop 0"); n.size = 4; out.append(n)
        out.append(i)
    off = 0; mis = 0
    for i in out:
        if i.size == 8 and off % 8: mis += 1
        off += i.size
    ins[:] = out
    return off, mis
```

```python
import sys, os
sys.path.insert(0, os.path.dirname(os.path.abspath(__file__)))
from asmlib import *

NAME = "recurrent_scan__ssm_conv_h3__swiglu_ffn__prompt"
STAMP = "--stamp" in sys.argv
FINE = "--fine" in sys.argv
HOLD = [a[7:] for a in sys.argv if a.startswith("--hold=")]
HOLD = tuple(int(x) for x in HOLD[0].split(":")) if HOLD else None
PROBE = [a[8:] for a in sys.argv if a.startswith("--probe=")]
PROBE = PROBE[0].split(":") if PROBE else None
def probe(name):
    if not PROBE or PROBE[0] != name: return []
    return [I("s_memrealtime s[28:29]", tag="stp"), I(f"s_sub_u32 s28, s28, s{sSTP}", needs=["stp"])]
OUTP = [a for a in sys.argv[1:] if not a.startswith("--")]
OUTP = OUTP[0] if OUTP else f"cdna_kernels/{NAME}.s"

NWG = 224; NGRID = 256
WS_KVT = 0; WS_Y = 2 << 20; WS_H = 4 << 20; WS_FLAG = 11 << 20; WS_STAMP = 12 << 20; WS_SIZE = 16 << 20
WR = 0; PS = 65536; HC = 114688; UB = 147968; ST = 157184; CS = 158720; YT = UB; LDS_SIZE = 159744
assert CS % 1024 == 0
sW, sR_, sCB, sRR, sF = 3, 4, 5, 6, 7
sXO = 8
sT0, sT1, sT2 = 15, 42, 43
X, K, V, SH, SK, WG, WU, WD, OUT, DBG, WS = (f"s[{b}:{b+3}]" for b in range(44, 88, 4))
sWm0, sPm0, sONE, sD0, sD1, sD2, sD3 = 88, 89, 90, 91, 92, 93, 94
sHS = 96
sSPIN = 95; sDD = 100; sSTP = 101
vLane = 1
vWA = 16; vWg = 20; vWu = 22; vXd = 24; vXr = 28; vL16 = 32; vWdD = 33; vWdR = 35
vFlag = 37; vP1 = 38; vP2 = 39; vPoll = 40; vS = 41; vQ = 43; vC = 45; vC1 = 47; vC2 = 48
vCA = 49; vCB = 50; vCS = 51; vBX = 52
vFlagW = 0
vF0 = 56
vF1 = 72
vXT = 96; vAX = 112; ACC = [128, 192]
def q(b, n=4, k="v"): return f"{k}[{b}:{b+n-1}]"
def wfrag(ks, j): return vF0 + 4 * (ks % 4) if j == 0 else vF1 + 12 * (ks % 2) + 4 * (j - 1)

P = Prog()
slow = []
nstamp = [0]
def stamp():
    if PROBE:
        n = nstamp[0]; nstamp[0] += 1
        return probe(f"s{n}")
    if HOLD:
        n = nstamp[0]; nstamp[0] += 1
        if n != HOLD[0]: return []
        return [I("Lhold:"), I("s_memrealtime s[16:17]", tag="stp"), I(f"s_sub_u32 s16, s16, s{sSTP}", needs=["stp"]),
                I(f"s_cmp_lt_u32 s16, {HOLD[1]}"), I("s_cbranch_scc1 Lhold")]
    if not STAMP: return []
    n = nstamp[0]; nstamp[0] += 1
    return [I(f"v_writelane_b32 v14, s52, {n-1}", needs=["stp"]), I("s_memtime s[52:53]", tag="stp")]
def fstamp(kind):
    return stamp() if (STAMP and kind in OPTS) else []
OPTS = [a[2:] for a in sys.argv if a.startswith("--")]

def srd(name, lo, size):
    b = int(name[2:name.index(":")])
    return [f"s_mov_b32 s{b}, s{lo}", f"s_and_b32 s{b+1}, s{lo+1}, 0xffff", f"s_mov_b32 s{b+2}, {size}", f"s_mov_b32 s{b+3}, 0x20000"]

def interleave(mf, fillers):
    for m, fl in zip(mf, fillers):
        P.emit(m); P.emit(fl)

def spread(slots, items, lo=0, hi=None):
    hi = len(slots) if hi is None else hi
    n = hi - lo
    for k, it in enumerate(items):
        s = lo + (k * n) // len(items)
        slots[s].extend(it if isinstance(it, list) else [it])

def poll_ld(voff, stage):
    if stage == 1: return f"buffer_load_dword v{vPoll}, v{voff}, {DBG}, 0 offen sc1"
    return f"buffer_load_dword v{vPoll}, v{voff}, {WS}, 0 offen sc1"
def poll_issue(voff, stage, tag): return I(poll_ld(voff, stage), tag=tag)
def poll_check(voff, stage, tag, thr=None):
    n = len(slow); thr = thr or stage
    slow.append(f"""Lslow{n}:
    s_mov_b32 s{sSPIN}, 0
Lspin{n}:
    s_sleep {8 if stage == 1 else 1}
    {poll_ld(voff, stage)}
    s_add_u32 s{sSPIN}, s{sSPIN}, 1
    s_waitcnt vmcnt(0)
    v_cmp_gt_u32 vcc, {thr}, v{vPoll}
    s_cmp_gt_u32 s{sSPIN}, 0x40000
    s_cbranch_scc1 Lback{n}
    s_cbranch_vccnz Lspin{n}
    s_branch Lback{n}""")
    return [I(f"v_cmp_gt_u32 vcc, {thr}, v{vPoll}", needs=[tag]), I("s_nop 0"), I(f"s_cbranch_vccnz Lslow{n}"), I(f"Lback{n}:")]
def flag_store(stage):
    return [I(f"v_mov_b32 v2, {stage}"), I(f"buffer_store_dword v2, v{vFlagW}, {WS}, 0 offen sc1", tag=f"flag{stage}")]

OPT = dict(a[2:].split("=") for a in sys.argv if a.startswith("--") and "=" in a and not a.startswith(("--hold", "--probe")))
def opt(k, d): return int(OPT.get(k, d))
P("s_cmp_ge_u32 s2, %d" % NGRID); P("s_cbranch_scc1 Lend")
if HOLD or PROBE: P("s_memrealtime s[98:99]", tag="ka")
if STAMP: P("s_memtime s[52:53]", tag="stp"); P("s_memrealtime s[54:55]", tag="ka")
nstamp[0] += 1
P("s_load_dwordx16 s[16:31], s[0:1], 0", tag="ka"); P("s_load_dwordx8 s[32:39], s[0:1], 64", tag="ka"); P("s_load_dwordx2 s[40:41], s[0:1], 96", tag="ka")
P("s_getpc_b64 s[42:43]"); P("s_and_b32 s8, s2, 0xf8")
P("v_cmp_gt_u32 vcc, 8, v0"); P("s_and_saveexec_b64 s[10:11], vcc"); P("s_cbranch_execz Lnopf")
P("v_add_u32 v2, s8, v0"); P("v_min_u32 v2, NLINES, v2"); P("v_lshlrev_b32 v2, 7, v2"); P("v_mov_b32 v3, s43")
P("v_add_co_u32 v2, vcc, s42, v2"); P("v_addc_co_u32 v3, vcc, 0, v3, vcc")
P.out.append(I("global_load_dword v250, v[2:3], off"))
P("Lnopf:"); P("s_mov_b64 exec, s[10:11]")
P(f"v_and_b32 v{vLane}, 63, v0"); P("v_lshrrev_b32 v5, 6, v0"); P(f"v_readfirstlane_b32 s{sW}, v5")
P(f"v_lshrrev_b32 v5, 3, v{vLane}"); P(f"v_and_b32 v6, 7, v{vLane}"); P(f"v_bfe_u32 v7, v{vLane}, 4, 1")
P(f"v_lshlrev_b32 v{vL16}, 4, v{vLane}"); P("v_mul_u32_u24 v8, 896, v5")
P(f"s_cmp_ge_u32 s2, {NWG}"); P("s_cbranch_scc1 Lhelper")
P("s_and_b32 s8, s2, 7"); P("s_lshr_b32 s9, s2, 3")
P("s_mul_i32 s10, s9, 37"); P("s_lshr_b32 s10, s10, 8")
P("s_mul_i32 s11, s10, 7"); P(f"s_sub_u32 s{sCB}, s9, s11")
P("s_lshr_b32 s11, s8, 1"); P("s_and_b32 s12, s8, 1")
P(f"s_lshl2_add_u32 s{sR_}, s11, s10"); P(f"s_lshl1_add_u32 s{sRR}, s{sR_}, s12")
P(f"s_mul_i32 s{sF}, s12, 7"); P(f"s_add_u32 s{sF}, s{sF}, s{sCB}")
P(f"s_lshl1_add_u32 s10, s10, s{sCB}"); P("s_add_u32 s10, s10, s11")
P("s_mul_i32 s9, s10, 37"); P("s_lshr_b32 s9, s9, 8"); P("s_mul_i32 s9, s9, 7"); P("s_sub_u32 s10, s10, s9")
P("s_lshl_b32 s8, s10, 7" if opt("rot", 1) else "s_mov_b32 s8, 0")
P(f"s_lshl_b32 s{sWm0}, s{sW}, 12"); P(f"s_mul_i32 s{sPm0}, s{sW}, 12288"); P(f"s_add_u32 s{sPm0}, s{sPm0}, {PS}")
P(f"s_lshl2_add_u32 s{sT0}, s{sR_}, s{sW}"); P(f"s_mul_i32 s{sT0}, s{sT0}, {32*896}")
P(f"v_lshrrev_b32 v9, 4, v{vLane}"); P("v_xor_b32 v9, v9, v6"); P("v_lshlrev_b32 v9, 4, v9")
P(f"v_add3_u32 v{vXd}, v8, v9, s{sT0}"); P("v_xor_b32 v9, 64, v9"); P(f"v_add3_u32 v9, v8, v9, s{sT0}")
P(f"v_add_u32 v{vXd+1}, {8*896-1024}, v9"); P(f"v_add_u32 v{vXd+2}, {16*896-2048}, v{vXd}"); P(f"v_add_u32 v{vXd+3}, {24*896-3072}, v9")
P(f"s_mul_i32 s{sT0}, s{sW}, {16*3584}"); P(f"s_lshl_b32 s{sT1}, s{sF}, 8"); P(f"s_add_u32 s{sT0}, s{sT0}, s{sT1}")
P(f"v_lshl_add_u32 v13, v8, 2, s{sT0}")
P("v_lshlrev_b32 v9, 1, v7"); P("v_xor_b32 v9, v9, v6")
P(f"v_lshl_add_u32 v{vWg}, v9, 4, v13"); P(f"v_xor_b32 v{vWu}, 64, v{vWg}")
P(f"v_add_u32 v{vWg+1}, {8*3584-1024}, v{vWg}"); P(f"v_add_u32 v{vWu+1}, {8*3584-1024}, v{vWu}")
for nm, sz in ((X, 1835008), (WG, 1605632), (WU, 1605632)): P.emit(srd(nm, 0, sz)[2:])
P.wait("ka")
if HOLD or PROBE: P(f"s_mov_b32 s{sSTP}, s98")
P.emit(probe("ka")); P.emit(fstamp("pro"))
for nm, lo in ((X, 16), (WG, 30), (WU, 32)): P.emit(srd(nm, lo, 0)[:2])

def x_loads(c):
    s = c % 3
    return [[I(f"s_add_u32 m0, s{sPm0}, {4096*s}"), I(f"buffer_load_dwordx4 v{vXd}, {X}, s{sXO+c} offen lds", tag=("x", c))]] + \
           [I(f"buffer_load_dwordx4 v{vXd+i}, {X}, s{sXO+c} offen offset:{1024*i} lds", tag=("x", c)) for i in (1, 2, 3)]
def w_loads(c):
    s = c % 4; pre = []
    if c == 7: pre = [I(f"v_add_u32 v{r}, 128, v{r}") for r in (vWg, vWg+1, vWu, vWu+1)]
    return [pre + [I(f"s_add_u32 m0, s{sWm0}, {WR+16384*s}"), I(f"s_mul_i32 s{sD0}, s{sXO+c%7}, 1792"),
             I(f"buffer_load_dwordx4 v{vWg}, {WG}, s{sD0} offen lds", tag=("w", c))],
            [I(f"buffer_load_dwordx4 v{vWg+1}, {WG}, s{sD0} offen offset:1024 lds", tag=("w", c)), I(f"s_add_u32 m0, s{sWm0}, {WR+16384*s+2048}")],
            I(f"buffer_load_dwordx4 v{vWu}, {WU}, s{sD0} offen lds", tag=("w", c)),
            I(f"buffer_load_dwordx4 v{vWu+1}, {WU}, s{sD0} offen offset:1024 lds", tag=("w", c))]
P.emit(w_loads(0)); P.emit(x_loads(0)); P.emit(fstamp("pro"))
for c in range(1, 7):
    P(f"s_add_u32 s{sXO+c}, s{sXO+c-1}, 128"); P(f"s_cmp_eq_u32 s{sXO+c}, 896"); P(f"s_cselect_b32 s{sXO+c}, 0, s{sXO+c}")
P.emit(w_loads(1)[:2])
P.emit(srd(SK, 24, 1835008)); P.emit(srd(WD, 34, 1605632)); P.emit(srd(OUT, 36, 1835008)); P.emit(srd(DBG, 38, 256)); P.emit(srd(WS, 40, WS_SIZE))
P(f"s_mov_b32 s{sONE}, 0x3f803f80")
sPAIR = 48
sHB = 49; sHE = 50; sYS = 51
P(f"s_lshl_b32 s{sT0}, s{sCB}, 5"); P(f"s_add_u32 s{sT0}, s{sT0}, s{sRR}")
P(f"s_lshl_b32 s{sT1}, s{sT0}, 2"); P(f"s_load_dword s{sDD}, s[26:27], s{sT1}", tag="dd"); P(f"s_lshl_b32 s{sPAIR}, s{sT0}, 13")
P(f"s_lshl_b32 s{sT0}, s{sT0}, 7"); P(f"s_add_u32 s{sT0}, s{sT0}, {WS_FLAG}")
P(f"v_mov_b32 v9, s{sT0}"); P("v_bfrev_b32 v13, 2"); P("v_cmp_eq_u32 vcc, 0, v0"); P(f"v_cndmask_b32 v{vFlagW}, v13, v9, vcc")
P(f"v_and_b32 v12, 31, v{vLane}"); P(f"v_lshlrev_b32 v{vP1}, 3, v12")
P(f"v_min_u32 v9, 13, v12"); P("v_lshrrev_b32 v13, 1, v9"); P("v_lshlrev_b32 v13, 5, v13"); P("v_and_b32 v9, 1, v9")
P(f"s_lshl_b32 s{sT1}, s{sR_}, 1"); P(f"v_add3_u32 v9, v13, v9, s{sT1}"); P(f"v_lshlrev_b32 v9, 7, v9"); P(f"v_add_u32 v{vP2}, {WS_FLAG}, v9")
P("v_lshlrev_b32 v9, 2, v7"); P("v_xor_b32 v9, v9, v6"); P("v_lshl_add_u32 v9, v9, 4, v8")
P(f"s_lshl_b32 s{sT0}, s{sCB}, 7"); P(f"s_mul_i32 s{sT1}, s{sW}, {16*896}"); P(f"s_add_u32 s{sT0}, s{sT0}, s{sT1}")
P(f"v_add_u32 v{vWdD}, s{sT0}, v9"); P(f"v_add_u32 v{vWdD+1}, {8*896-1024}, v{vWdD}")
P(f"v_and_b32 v2, 3, v{vLane}"); P(f"v_bfe_u32 v3, v{vLane}, 2, 2"); P(f"v_lshrrev_b32 v9, 5, v{vLane}")
P("v_lshlrev_b32 v10, 3, v2"); P("v_lshl_add_u32 v10, v3, 7, v10")
P("v_lshrrev_b32 v11, 1, v3")
P("v_lshl_add_u32 v4, v7, 11, v10"); P("v_lshl_add_u32 v4, v9, 10, v4")
P("v_lshl_add_u32 v13, v7, 1, v11"); P(f"v_xor_b32 v13, s{sW}, v13")
P(f"v_lshl_add_u32 v{vWA}, v13, 5, v4")
for j in (1, 2, 3): P(f"v_xor_b32 v{vWA+j}, {32*j}, v{vWA}")
P(f"v_bfe_u32 v13, v{vLane}, 1, 3"); P("v_xor_b32 v13, v13, v9"); P(f"v_lshl_add_u32 v13, v13, 4, s{sPm0}")
P(f"v_lshl_add_u32 v{vXr}, v12, 7, v13")
for j in (1, 2, 3): P(f"v_xor_b32 v{vXr+j}, {32*j}, v{vXr}")
P("v_lshl_add_u32 v4, v9, 9, v10"); P("v_lshl_add_u32 v13, v11, 1, v7"); P("v_lshl_add_u32 v4, v13, 5, v4")
P(f"v_add_u32 v{vWdR}, s{sPm0}, v4"); P(f"v_xor_b32 v{vWdR+1}, 64, v{vWdR}")
P(f"s_lshr_b32 s{sT0}, s{sW}, 1"); P(f"s_and_b32 s{sT1}, s{sW}, 1")
P(f"s_mul_i32 s{sD2}, s{sT0}, 16640"); P(f"s_mul_i32 s{sHE}, s{sT1}, 8320"); P(f"s_add_u32 s{sHE}, s{sHE}, s{sD2}"); P(f"s_add_u32 s{sHE}, s{sHE}, {HC+48}")
P(f"s_lshl_b32 s{sHB}, s{sT0}, 12"); P(f"s_add_u32 s{sHB}, s{sHB}, s{sPAIR}"); P(f"s_lshl_b32 s{sT2}, s{sT1}, 2"); P(f"s_sub_u32 s{sHB}, s{sHB}, s{sT2}"); P(f"s_add_u32 s{sHB}, s{sHB}, 16")
P(f"s_lshl_b32 s{sT1}, s{sT1}, 8")
P(f"s_add_u32 s{sD2}, s{sD2}, s{sT1}"); P(f"s_add_u32 s{sD2}, s{sD2}, {HC+56}")
P(f"s_mul_i32 s{sD1}, s{sT0}, 4608"); P(f"s_sub_u32 s{sD1}, s{sD1}, s{sT1}"); P(f"s_add_u32 s{sD1}, s{sD1}, {UB+288}")
P(f"v_and_b32 v4, 48, v{vLane}")
P("v_mul_u32_u24 v13, 4160, v3"); P("v_lshl_add_u32 v13, v2, 3, v13"); P("v_sub_u32 v13, v13, v4"); P(f"v_add_u32 v{vCA}, s{sD2}, v13")
P(f"v_and_b32 v13, 15, v{vLane}"); P("v_lshl_add_u32 v13, v13, 5, v4"); P(f"v_add_u32 v{vCB}, s{sD1}, v13")
P(f"s_lshl_b32 s{sT0}, s{sW}, 8"); P(f"s_add_u32 s{sT0}, s{sT0}, {CS}"); P(f"v_lshl_add_u32 v{vCS}, v{vLane}, 2, s{sT0}")
P(f"s_lshl2_add_u32 s{sT0}, s{sR_}, s{sW}"); P(f"s_mul_i32 s{sT0}, s{sT0}, 114688")
P(f"s_lshl_b32 s{sT1}, s{sF}, 13"); P(f"s_add_u32 s{sT0}, s{sT0}, s{sT1}"); P(f"s_add_u32 s{sT0}, s{sT0}, {WS_H}")
for j in range(4):
    P(f"s_xor_b32 s{sT1}, s{sW}, {j}"); P(f"s_lshl_b32 s{sT1}, s{sT1}, 10"); P(f"s_add_u32 s{sHS+j}, s{sT0}, s{sT1}")
for r in list(range(vS, vS+6)) + list(range(vBX, vBX+4)) + list(range(vAX, vAX+16)): P(f"v_mov_b32 v{r}, 0")
P(f"v_mul_u32_u24 v13, 4608, v9"); P(f"v_lshl_add_u32 v13, v12, 4, v13"); P(f"v_add_u32 v13, {UB}, v13")
P(f"ds_write_b128 v13, {q(vAX)}", tag="z")
P(f"v_mul_u32_u24 v13, 4160, v5"); P(f"v_lshl_add_u32 v13, v6, 2, v13"); P(f"v_add_u32 v13, {HC}, v13")
P(f"ds_write_b32 v13, v{vAX}", tag="z")
P("v_lshlrev_b32 v10, 1, v2"); P("v_sub_u32 v10, v10, v3"); P("v_lshlrev_b32 v10, 1, v10")
P(f"v_bfe_u32 v11, v{vLane}, 2, 3"); P("v_mul_u32_u24 v11, 4160, v11"); P("v_lshl_add_u32 v11, v2, 2, v11"); P(f"v_add_u32 v11, {HC+32}, v11")
P("v_max_i32 v12, 0, v10"); P("v_lshl_add_u32 v12, v7, 12, v12")
P.emit(fstamp("pro")); P.emit(w_loads(1)[2:]); P.emit(x_loads(1)); P.emit(fstamp("pro"))
if opt("touch", 1):
    P("s_mov_b64 exec, 0xffff")
    P(f"s_lshl2_add_u32 s{sT0}, s{sR_}, s{sW}"); P(f"s_mul_i32 s{sT0}, s{sT0}, {7*3584}"); P(f"s_lshl_b32 s{sT1}, s{sF}, 8"); P(f"s_add_u32 s{sT0}, s{sT0}, s{sT1}")
    P(f"v_min_u32 v2, 6, v{vLane}"); P("v_mul_u32_u24 v2, 3584, v2")
    P(f"buffer_load_dword v251, v2, {WG}, s{sT0} offen offset:128", tag="t"); P(f"buffer_load_dword v252, v2, {WU}, s{sT0} offen offset:128", tag="t")
    P(f"s_lshl2_add_u32 s{sT0}, s{sRR}, s{sW}"); P(f"s_mul_i32 s{sT0}, s{sT0}, {14*896}"); P(f"s_lshl_b32 s{sT1}, s{sCB}, 7"); P(f"s_add_u32 s{sT0}, s{sT0}, s{sT1}")
    P(f"v_min_u32 v2, 13, v{vLane}"); P("v_mul_u32_u24 v2, 896, v2")
    P(f"buffer_load_dword v253, v2, {WD}, s{sT0} offen", tag="t")
    P(f"s_lshl_b32 s{sT0}, s{sW}, 11"); P(f"s_add_u32 s{sT0}, s{sT0}, s{sPAIR}"); P(f"v_lshlrev_b32 v2, 7, v{vLane}")
    P(f"buffer_load_dword v254, v2, {SK}, s{sT0} offen", tag="t")
    P("s_mov_b64 exec, -1")
P.wait(("x", 0), "dd", "z"); P("s_barrier")
P.emit(stamp())

def w_reads(c, ks, js=(0, 1, 2, 3)):
    o = []
    for j in js:
        for h in (0, 1):
            o.append(I(f"ds_read_b64_tr_b16 {q(wfrag(ks, j)+2*h, 2)}, v{vWA+j} offset:{WR+16384*(c%4)+4096*ks+512*h}", tag=("wf", c, ks, j)))
    return o
def x_reads(c, ks):
    off = 4096 * (c % 3)
    return [I(f"ds_read_b128 {q(16*c+4*ks, 4, 'a')}, v{vXr+ks} offset:{off}", tag=("xf", c, ks)),
            I(f"ds_read_b128 {q(vXT+4*ks)}, v{vXr+ks} offset:{off}", tag=("xt", c, ks))]
def g1_mfma(c, ks, j):
    a = ACC[c // 7] + 16 * j; cc = c % 7
    src = "0" if (cc == 0 and ks == 0) else q(a, 16)
    needs = [("wf", c, ks, 3 if (c or ks) else j)] + ([("xf", c, ks)] if c < 7 else [])
    return I(f"v_mfma_f32_32x32x16_bf16 {q(a,16)}, {q(wfrag(ks,j))}, {q(16*cc+4*ks,4,'a')}, {src}", needs=needs)
WDW = {7: ("wr", 2), 8: ("wr", 3), 9: ("ps", 2), 10: ("wr", 0), 11: ("ps", 0), 12: ("wr", 1), 13: ("ps", 1)}
def wd_where(u): return WDW[u] if u >= 7 else ("ps", (4 + u) % 3)
def wd_loads(u):
    kind, s = wd_where(u); o = []
    for k in (0, 1):
        st = 2 * u + k; g, f2 = st // 14, st % 14
        m0 = f"s_add_u32 m0, s{sPm0}, {4096*s+2048*k}" if kind == "ps" else f"s_add_u32 m0, s{sWm0}, {WR+16384*s+2048*k}"
        o.append([I(m0), I(f"s_mov_b32 s{sD1}, {(128*f2+64*g)*896}"), I(f"buffer_load_dwordx4 v{vWdD}, {WD}, s{sD1} offen lds", tag=("wd", u))])
        o.append(I(f"buffer_load_dwordx4 v{vWdD+1}, {WD}, s{sD1} offen offset:1024 lds", tag=("wd", u)))
    return o
def wd_reg(st, mt): return (112 + 8 * st if st < 14 else 8 * (st - 14)) + 4 * mt
vWdR2 = vXd
def wd_reads(u):
    kind, s = wd_where(u); o = []
    for k in (0, 1):
        for mt in (0, 1):
            for h in (0, 1):
                ar, off = (vWdR, 4096 * s) if kind == "ps" else (vWdR2, 16384 * s)
                o.append(I(f"ds_read_b64_tr_b16 {q(wd_reg(2*u+k, mt)+2*h, 2, 'a')}, v{ar+mt} offset:{off+2048*k+1024*h}", needs=[("wd", u)], tag=("wdf", u)))
    return o
def silu_tile(g, j, packed, T):
    a = ACC[g] + 16 * j; o = []
    if packed:
        t = vAX + 8 * (j % 2)
        o += [I(f"v_pk_mul_f32 {q(t+d,2)}, {q(a+d,2)}, {q(vC1-1,2)} op_sel:[0,1] op_sel_hi:[1,1]") for d in range(0, 8, 2)]
        o += [I(f"v_exp_f32 v{t+d}, v{t+d}") for d in range(8)]
        o += [I(f"v_pk_mul_f32 {q(a+8+d,2)}, {q(a+d,2)}, {q(a+8+d,2)}") for d in range(0, 8, 2)]
        o += [I(f"v_pk_fma_f32 {q(t+d,2)}, {q(t+d,2)}, {q(vC2,2)}, {q(vC2,2)} op_sel_hi:[1,0,0]") for d in range(0, 8, 2)]
        o += [I(f"v_rcp_f32 v{t+d}, v{t+d}") for d in range(8)]
        o += [I(f"v_pk_mul_f32 {q(a+8+d,2)}, {q(a+8+d,2)}, {q(t+d,2)}") for d in range(0, 8, 2)]
        o += [I(f"v_cvt_pk_bf16_f32 v{T+p}, v{a+8+2*p}, v{a+9+2*p}") for p in range(4)]
    else:
        for p in range(4):
            g0, g1, u0, u1 = a+2*p, a+2*p+1, a+8+2*p, a+9+2*p
            t0, t1 = T + 4 + 2*(p % 2), T + 5 + 2*(p % 2)
            o += [I(f"v_mul_f32 v{t0}, v{vC1}, v{g0}"), I(f"v_mul_f32 v{t1}, v{vC1}, v{g1}"),
                  I(f"v_exp_f32 v{t0}, v{t0}"), I(f"v_mul_f32 v{u0}, v{g0}, v{u0}"), I(f"v_exp_f32 v{t1}, v{t1}"),
                  I(f"v_fma_f32 v{t0}, v{t0}, v{vC2}, v{vC2}"), I(f"v_mul_f32 v{u1}, v{g1}, v{u1}"), I(f"v_rcp_f32 v{t0}, v{t0}"),
                  I(f"v_fma_f32 v{t1}, v{t1}, v{vC2}, v{vC2}"), I(f"v_rcp_f32 v{t1}, v{t1}"),
                  I(f"v_mul_f32 v{u0}, v{u0}, v{t0}"), I(f"v_mul_f32 v{u1}, v{u1}, v{t1}"),
                  I(f"v_cvt_pk_bf16_f32 v{T+p}, v{u0}, v{u1}")]
    o.append(I(f"buffer_store_dwordx4 {q(T)}, v{vL16}, {WS}, s{sHS+j} offen sc1", tag=("hst", g)))
    return o
def bf16r(d, s):
    return [I(f"v_cvt_pk_bf16_f32 v{d}, v{s}, v{s}"), I(f"v_and_b32 v{d}, 0xffff0000, v{d}")]
def stats_mean():
    return [I(f"v_add_f32 v{vS}, v{vS}, v{vS+1}"), I(f"v_add_f32 v{vQ}, v{vQ}, v{vQ+1}"),
         I(f"v_mov_b32 v{vS+1}, v{vS}"), I(f"v_mov_b32 v{vQ+1}, v{vQ}"),
         I(f"v_permlane32_swap_b32 v{vS}, v{vS+1}"), I(f"v_permlane32_swap_b32 v{vQ}, v{vQ+1}"),
         I(f"v_add_f32 v{vS}, v{vS}, v{vS+1}"), I(f"v_add_f32 v{vQ}, v{vQ}, v{vQ+1}"),
         I(f"v_mul_f32 v{vS}, 0x3b124925, v{vS}"), I(f"v_mul_f32 v{vQ}, 0x3b124925, v{vQ}"),
         I(f"v_cvt_pk_bf16_f32 v{vBX}, -v{vS}, -v{vS}")]
def stats_rest():
    o = [I(f"v_fma_f32 v{vQ}, -v{vS}, v{vS}, v{vQ}"), I(f"v_max_f32 v{vQ}, 0, v{vQ}")]
    o += bf16r(vQ, vQ) + [I(f"v_add_f32 v{vQ}, 0x3727c5ac, v{vQ}")] + bf16r(vQ, vQ) + [I(f"v_sqrt_f32 v{vQ}, v{vQ}"), I(f"v_and_b32 v5, 31, v{vLane}")] + bf16r(vQ, vQ)
    o += [I(f"v_rcp_f32 v2, v{vQ}"), I(f"v_mul_f32 v{vC2}, v{vQ}, v{vQ}"), I(f"v_and_b32 v3, 0xffff0000, v{vBX}"),
          I(f"v_mul_f32 v{vC1}, 0xbfb8aa3b, v2"), I("v_mul_f32 v3, v3, v2"),
          I(f"s_lshl_b32 s{sT0}, s{sW}, 8"), I(f"s_add_u32 s{sT0}, s{sT0}, {ST}"),
          I(f"v_lshl_add_u32 v5, v5, 3, s{sT0}"), I("ds_write_b64 v5, v[2:3]", tag="stw")]
    return o
def cs_final():
    return [I(f"v_add_f32 v{vC}, v{vC}, v{vC+1}")] + bf16r(vC+1, vC) + [I(f"v_sub_f32 v{vC+1}, v{vC}, v{vC+1}"),
            I(f"v_cvt_pk_bf16_f32 v4, v{vC}, v{vC+1}"), I(f"ds_write_b32 v{vCS}, v4", tag="csw")]
def cs_reads(g):
    o = []
    for j in range(4):
        if j == 0: o.append(I(f"ds_read_b32 v{vAX}, v{vCS}", tag=("csr", g)))
        else: o.append([I(f"v_xor_b32 v4, {256*j}, v{vCS}"), I(f"ds_read_b32 v{vAX+4*j}, v4", tag=("csr", g))])
    return o
def ext_mfma(g, j):
    a = ACC[g] + 16 * j
    return I(f"v_mfma_f32_32x32x16_bf16 {q(a,16)}, {q(vAX+4*j)}, {q(vBX)}, {q(a,16)}", needs=[("csr", g)])
def hc_load(e, i):
    ld = f"buffer_load_dwordx4 v{vL16}, {SK}, s{sHB} offen offset:{1024*i} lds"
    pre = [I(f"s_sub_u32 s{sHB}, s{sHB}, 2")] if (e == 1 and i == 0) else []
    return [I(f"s_add_u32 m0, s{sHE}, {4160*e}")] + pre + [I(ld, tag="hc")]
hc_head_ld = I(f"buffer_load_dword v13, v12, {SK}, s{sPAIR} offen", tag="hh")
hc_head = [I("v_lshlrev_b32 v12, 16, v13", needs=["hh"]), I("v_cmp_gt_i32 vcc, 0, v10"), I("v_cndmask_b32 v13, v13, v12, vcc"),
           I("v_cmp_gt_i32 vcc, -2, v10"), I("v_cndmask_b32 v13, v13, 0, vcc"), I("ds_write_b32 v11, v13", tag="hw")]
def u_loads():
    return [[I(f"s_lshl_b32 s{sT1}, s{sW}, 11"), I(f"s_add_u32 s{sT0}, s{sPAIR}, s{sT1}"), I(f"s_lshr_b32 s{sT2}, s{sW}, 1"), I(f"s_lshl_b32 s{sT2}, s{sT2}, 9")],
            [I(f"s_add_u32 s{sT1}, s{sT1}, s{sT2}"), I(f"s_add_u32 m0, s{sT1}, {UB+512}"), I(f"buffer_load_dwordx4 v{vL16}, {WS}, s{sT0} offen sc1 lds", tag="u")],
            I(f"buffer_load_dwordx4 v{vL16}, {WS}, s{sT0} offen offset:1024 sc1 lds", tag="u")]

def g_reads(c, ks):
    if c >= 14: return [[], [], [], []]
    o = [w_reads(c, ks, (j,)) for j in range(4)]
    if c < 7: xr = x_reads(c, ks); o[0] = [xr[0]] + o[0]; o[1] = [xr[1]] + o[1]
    return o
P.emit(g_reads(0, 0)); P.emit(g_reads(0, 1))
pend = w_loads(2) + x_loads(2) + w_loads(3)
e0 = []
for j in range(4): e0 += silu_tile(0, j, False, vXT + 8 * (j % 2))
E0N = opt("e0n", 80)
e0slots = [[] for _ in range(112)]; spread(e0slots, e0, 1, E0N)
carry = [[] for _ in range(8)]
spread(carry, pend, 0, 8)
for c in range(14):
    g = c // 7; last = (c % 7 == 6)
    slots = g_reads(c, 2) + g_reads(c, 3)
    for k in range(8): slots[k] += carry[k] + (e0slots[16*(c-7)+k] if c >= 7 else [])
    if c >= 7: spread(slots, wd_reads(c-7), 0, 7)
    if c == 3: spread(slots, hc_head, 2, 8)
    interleave([g1_mfma(c, ks, j) for ks in (0, 1) for j in range(4)], slots)
    P.wait(("wf", c, 3, 0), *([("xt", c, 3)] if c < 7 else []))
    cacc = [vC, vC+1] if c < 7 else [vC, vC+1, vS, vS+1]
    for i in range(16):
        a = cacc[i % len(cacc)]
        if c % 7 == 0 and i < len(cacc): P(f"v_dot2_f32_bf16 v{a}, s{sONE}, v{vF0+i}, 0")
        else: P(f"v_dot2c_f32_bf16 v{a}, s{sONE}, v{vF0+i}")
        if c < 7: P(f"v_dot2c_f32_bf16 v{vS+i%2}, s{sONE}, v{vXT+i}"); P(f"v_dot2c_f32_bf16 v{vQ+i%2}, v{vXT+i}, v{vXT+i}")
    P.emit(g1_mfma(c, 2, 0))
    if last: P.emit(([I(f"v_add_f32 v{vC}, v{vC}, v{vS}"), I(f"v_add_f32 v{vC+1}, v{vC+1}, v{vS+1}")] if c == 13 else []) + cs_final())
    needs = [("wf", c, 3, 3)]
    if c >= 7: needs.append(("wdf", c-7))
    if c < 13: needs.append(("w", c+1))
    if c < 6: needs.append(("x", c+1))
    if last: needs.append("csw")
    if c == 13: needs += [("hst", 0), "u", "hc"]
    P.wait(*needs); P("s_barrier")
    if c in (6, 13) or FINE: P.emit(stamp())
    pend = []
    if c + 3 < 7: pend += x_loads(c+3)
    if c + 4 < 14: pend += w_loads(c+4)
    if 4 <= c <= 10: pend += wd_loads(c-4)
    if c == 10: pend += wd_loads(7)
    if c == 11: pend += wd_loads(8) + wd_loads(9)
    if c == 12: pend += wd_loads(10) + wd_loads(11)
    if c == 13: pend += wd_loads(12) + wd_loads(13)
    if c == 0: pend += [hc_head_ld]
    if 1 <= c <= 8: pend += [hc_load((c-1) // 4, (c-1) % 4)]
    if c == 4:
        pend += [[I(f"s_sub_u32 s{sT0}, s{sWm0}, s{sPm0}"), I(f"v_add_u32 v{vWdR2}, s{sT0}, v{vWdR}"), I(f"v_add_u32 v{vWdR2+1}, s{sT0}, v{vWdR+1}")]]
    if c == 3:
        pend += [[I(f"v_mov_b32 v{192+k}, -1") for k in range(4)],
                 [I(f"s_lshl_b32 s{sT1}, s{sW}, 11"), I(f"s_add_u32 s{sYS}, s{sPAIR}, s{sT1}"), I(f"s_add_u32 s{sYS}, s{sYS}, {WS_Y}")]]
    if c in (4, 5): pend += [I(f"buffer_store_dwordx4 v[192:195], v{vL16}, {WS}, s{sYS} offen offset:{1024*(c-4)} sc1", tag="sen")]
    if c == 12:
        pend += [[I(f"s_lshl_b32 s{sT0}, s{sCB}, 12"), I(f"s_add_u32 s{sT0}, s{sT0}, {WS_FLAG}"), I(f"v_lshl_add_u32 v{vP1}, v{vP1}, 4, s{sT0}")],
                 [I(f"v_cmp_gt_u32 vcc, 32, v{vLane}"), I(f"v_cndmask_b32 v{vP1}, v{vP1}, v{vP2}, vcc"), I(f"v_cndmask_b32 v{vFlag}, 2, 3, vcc")]]
    if c == 10: pend = [poll_issue(vP1, 1, "p1")] + pend
    if c == 11: pend = pend[:4] + [poll_check(vP1, 1, "p1")] + u_loads() + pend[4:]
    if c == 13: pend = [flag_store(2)] + pend + [[I(f"s_add_u32 s{sHS+j}, s{sHS+j}, 4096") for j in range(4)]]
    nb = 12 if last else 8
    slots = g_reads(c+1, 0) + g_reads(c+1, 1) + [[] for _ in range(nb - 8)]
    win = [[] for _ in range(nb + (8 if c < 13 else 0))]
    spread(win, pend, 1, len(win))
    for k in range(nb): slots[k] += win[k]
    carry = win[nb:]
    if c >= 7:
        for k in range(8): slots[k] += e0slots[16*(c-7)+8+k]
    if last: spread(slots, cs_reads(g), 0, 4)
    if c == 6: spread(slots, stats_mean() + stats_rest(), 0, 12)
    P.emit(slots[0])
    interleave([g1_mfma(c, ks, j) for ks in (2, 3) for j in range(4)][1:] + ([ext_mfma(g, j) for j in range(4)] if last else []), slots[1:])
pend = []

CACC = 56; CBUF = [128, 192]
def conv_reads(rr):
    b = CBUF[rr % 2]; o = []
    for p in range(8):
        o.append(I(f"ds_read_b128 {q(b+32+4*p)}, v{vCB} offset:{512*p+64*(3-rr)}", tag=("cb", rr, p)))
        for h in (0, 1):
            o.append(I(f"ds_read_b64_tr_b16 {q(b+4*p+2*h,2)}, v{vCA} offset:{64*rr+512*p+8*(1-h)}", tag=("ca", rr, p)))
    return o
e1 = []; e1st = []
for j in range(4):
    t = silu_tile(1, j, True, vXT + 4 * j); e1 += t[:-1]; e1st.append(t[-1])
slots = [[] for _ in e1]
n = len(e1)
c0 = conv_reads(0)
P.emit(c0[:6])
PA = n * opt("p2a", 12) // 16
spread(slots, [poll_issue(vP2, 2, "p2a")] + e1st[:3], max(PA, n*3//4), n-2) if PA >= n*3//4 else None
if PA < n*3//4:
    slots[PA] += [poll_issue(vP2, 2, "p2a")]
    for j in range(3): slots[max(PA + 2 + 2*j, (j+1)*n//4)] += [e1st[j]]
spread(slots, c0[6:12], n-14, n-2)
slots[-1] += [e1st[3]]
interleave(e1, slots)
P.emit(stamp())

vHL = vXr
def hreg(i):
    if i < 28: return q(4*i, 4, 'a')
    i -= 28
    if i < 8: return q(224 + 4*i, 4, 'a')
    if i < 14: return q(232 + 4*(i-8))
    if i < 20: return q(104 + 4*(i-14))
    return q(192 + 4*(i-20))
HORD = [(st, nt) for st in range(14) for nt in (0, 1)] + [(st, 0) for st in range(14, 28)] + [(st, 1) for st in range(14, 28)]
def h_load(i):
    st, nt = HORD[i]; g, f2 = st // 14, st % 14
    ld = I(f"buffer_load_dwordx4 {hreg(i)}, v{vHL+nt}, {WS}, s{sD0} offen sc1", tag=("h", i))
    return [I(f"s_mov_b32 s{sD0}, {8192*f2+4096*g}"), ld] if (nt == 0 or g == 1) else [ld]
hl_setup = [I(f"s_mul_i32 s{sT0}, s{sRR}, {2*114688}"), I(f"s_lshl_b32 s{sT1}, s{sW}, 10"), I(f"s_add_u32 s{sT0}, s{sT0}, s{sT1}"),
            I(f"s_add_u32 s{sT0}, s{sT0}, {WS_H}"), I(f"v_add_u32 v{vHL}, s{sT0}, v{vL16}"), I(f"v_add_u32 v{vHL+1}, 114688, v{vHL}")]
xs = [I(f"v_lshrrev_b32 v4, 4, v{vLane}"), I(f"v_lshl_add_u32 v5, v4, 2, v{vLane}"), I("v_and_b32 v5, 15, v5"), I("v_lshl_add_u32 v5, v4, 4, v5"),
      I(f"s_lshl_b32 s{sT0}, s{sW}, 13"), I(f"s_add_u32 s{sT0}, s{sT0}, {HC}"), I(f"v_lshl_add_u32 v8, v5, 4, s{sT0}")]
xs2 = [I(f"v_and_b32 v4, 3, v{vLane}"), I(f"v_lshrrev_b32 v5, 2, v{vLane}"), I("v_lshl_add_u32 v5, v4, 2, v5"), I("v_and_b32 v5, 15, v5"), I("v_lshl_add_u32 v5, v4, 4, v5"),
      I(f"s_lshl_b32 s{sT1}, s{sW}, 11"), I(f"s_add_u32 s{sT0}, s{sT1}, {HC}"), I(f"v_lshl_add_u32 v3, v5, 4, s{sT0}"),
      I(f"s_lshl_b32 s{sT0}, s{sW}, 10"), I(f"s_add_u32 s{sT0}, s{sT0}, {UB+512}"), I(f"v_lshl_add_u32 v7, v{vLane}, 3, s{sT0}"),
      I(f"s_lshl_b32 s{sD2}, s{sDD}, 16"), I(f"s_and_b32 s{sD3}, s{sDD}, 0xffff0000")]
F3 = opt("f3", 2)
for rr in range(4):
    b = CBUF[rr % 2]; mf = []
    for qq in range(8):
        for p in range(qq + 1):
            a = CACC + 4*qq
            src = "0" if (rr == 0 and p == 0) else q(a)
            need = qq | 1 if rr == 0 else (qq | 3)
            mf.append(I(f"v_mfma_f32_16x16x32_bf16 {q(a)}, {q(b+4*p)}, {q(b+32+4*(qq-p))}, {src}", needs=[("ca", rr, need)]))
    slots = [[] for _ in mf]
    if rr == 0: spread(slots, c0[12:], 0, 7); spread(slots, conv_reads(1), 8, 34); spread(slots, hl_setup, 20, 36)
    elif rr < 3: spread(slots, conv_reads(rr+1), 0, 32)
    if rr == F3 and rr != 3: slots[0] += [W(("hst", 1)), I("s_barrier")] + flag_store(3)
    if rr == 1: spread(slots, [poll_check(vP2, 2, "p2a")] + [h_load(i) for i in range(9)], 1, 36)
    if rr == 2: spread(slots, [h_load(i) for i in range(9, 18)], 2, 36)
    if rr == 3:
        slots[0] += [W(("ca", 3, 7), ("hst", 1)), I("s_barrier")] + (flag_store(3) if F3 == 3 else [])
        spread(slots, xs, 1, 14); spread(slots, [h_load(i) for i in range(18, 28)], 1, 30)
        for k in range(5): slots[16 + 4*k] += [I(f"ds_write_b128 v8, {q(CACC+4*k)} offset:{1024*k}", tag="xw")]
        spread(slots, xs2, 14, 34)
        if F3 != 3: slots[30] += [poll_issue(vP1, 3, "p2b")]
    interleave(mf, slots)
    if rr < 3: P.emit(fstamp("late"))
P.emit(stamp())

GA = 128; UR = 88
def g2_mfma(i, mt):
    st, nt = HORD[i]; a = GA + 32*nt + 16*mt
    src = "0" if st == 0 else q(a, 16)
    return I(f"v_mfma_f32_32x32x16_bf16 {q(a,16)}, {q(wd_reg(st, mt),4,'a')}, {hreg(i)}, {src}", needs=[("h", i), ("wdf", st // 2)])
mf = [g2_mfma(i, mt) for i in range(56) for mt in (0, 1)]
slots = [[] for _ in mf]
for k in (5, 6, 7): slots[2*(k-5)] += [I(f"ds_write_b128 v8, {q(CACC+4*k)} offset:{1024*k}", tag="xw")]
if F3 == 3: slots[6] += [poll_issue(vP1, 3, "p2b")]
slots[5] += [I(f"ds_read_b64 {q(UR+4*e+2*ch,2)}, v7 offset:{4608*ch+512*e}", tag="ur") for e in (0, 1) for ch in (0, 1)]
slots[7] += [W("xw", "ur"), I("s_barrier")]
spread(slots, [I(f"ds_read_b128 {q(CACC+16*e+4*w2)}, v3 offset:{8192*w2+1024*e}", tag=("xr", e)) for e in (0, 1) for w2 in range(4)], 7, 10)
ce = []
for e in (0, 1):
    b = CACC + 16 * e
    for ch in (0, 1):
        bb = b + 8 * ch
        ce += [I(f"v_add_f32 v{bb+jj}, v{bb+jj}, v{bb+4+jj}", needs=[("xr", e)]) for jj in range(4)]
        for d in (0, 1):
            u = UR + 4*e + 2*ch + d
            ce += [I(f"v_lshlrev_b32 v{bb+4+2*d}, 16, v{u}"), I(f"v_and_b32 v{bb+5+2*d}, 0xffff0000, v{u}")]
        ce += [I(f"v_fmac_f32 v{bb+jj}, s{[sD2, sD3][ch]}, v{bb+4+jj}") for jj in range(4)]
    ce += [I(f"v_cvt_pk_bf16_f32 v{b+4+jj}, v{b+jj}, v{b+8+jj}") for jj in range(4)]
    ce.append(I(f"buffer_store_dwordx4 {q(b+4)}, v{vL16}, {WS}, s{sYS} offen offset:{1024*e} sc1", tag="yst"))
spread(slots, ce, 11, 25)
H1_AT = opt("h1at", 14)
slots[H1_AT] += poll_check(vP1, 3, "p2b", f"v{vFlag}")
for i in range(28, 56):
    s = H1_AT + 1 + (i - 28) * opt("h1sp", 7) // 4
    assert s < 2 * i - 8 and s < 72
    slots[s] += h_load(i)
for u in range(7, 14): spread(slots, wd_reads(u), max(12, 8*(u-7)+8), max(12, 8*(u-7)+8) + 4)
XR = 56; YL = 64; XF = 72; SR = 88; YG = 96; XN = 16; vRW = 41; PR = 224
fin_setup = [I(f"v_lshrrev_b32 v5, 3, v{vLane}"), I(f"v_and_b32 v6, 7, v{vLane}"),
    I("v_mul_u32_u24 v8, 896, v5"), I("v_lshl_add_u32 v8, v6, 4, v8"),
    I(f"s_lshl3_add_u32 s{sT0}, s{sRR}, s{sW}"), I(f"s_mul_i32 s{sT0}, s{sT0}, {8*896}"),
    I(f"s_lshl_b32 s{sT1}, s{sCB}, 7"), I(f"s_add_u32 s{sD2}, s{sT0}, s{sT1}"), I(f"s_add_u32 s{sD3}, s{sD2}, {32*896}"),
    I(f"buffer_load_dwordx4 {q(XR)}, v8, {X}, s{sD2} offen", tag="xt"), I(f"buffer_load_dwordx4 {q(XR+4)}, v8, {X}, s{sD3} offen", tag="xt"),
    I(f"v_and_b32 v13, 15, v{vLane}"), I(f"s_lshl_b32 s{sT0}, s{sW}, 1"), I(f"v_xor_b32 v13, s{sT0}, v13"), I("v_lshlrev_b32 v13, 4, v13"),
    I(f"v_lshrrev_b32 v3, 4, v{vLane}"), I("v_lshl_add_u32 v3, v3, 13, v13"), I("v_xor_b32 v4, 16, v3"), I(f"v_add_u32 v4, 32768, v4"),
    I(f"s_lshl2_add_u32 s{sT0}, s{sCB}, s{sW}"), I(f"s_lshl_b32 s{sT0}, s{sT0}, 16"),
    I(f"s_lshl_b32 s{sT1}, s{sRR}, 8"), I(f"s_add_u32 s{sT0}, s{sT0}, s{sT1}"), I(f"s_add_u32 s{sD1}, s{sT0}, {WS_Y}"),
    I(f"s_lshl_b32 s{sT1}, s{sW}, 11"), I(f"s_add_u32 s{sT0}, s{sT1}, {YT}"), I(f"v_add_u32 v13, s{sT0}, v{vL16}"),
    I("v_lshlrev_b32 v9, 1, v6"), I("v_xor_b32 v9, v9, v5"), I("v_lshlrev_b32 v9, 4, v9"), I("v_lshl_add_u32 v9, v5, 8, v9"),
    I(f"s_add_u32 s{sT0}, s{sT1}, {PS}"), I(f"v_add_u32 v9, s{sT0}, v9"), I("v_xor_b32 v10, 16, v9"),
    I(f"v_lshrrev_b32 v7, 5, v{vLane}"), I(f"s_lshl_b32 s{sT0}, s{sW}, 1"), I(f"v_add_u32 v11, s{sT0}, v7"), I("v_xor_b32 v11, v11, v6"),
    I("v_lshlrev_b32 v11, 4, v11"), I("v_lshl_add_u32 v11, v6, 10, v11"), I("v_and_b32 v2, 3, v5"), I("v_lshl_add_u32 v11, v2, 2, v11"), I(f"v_add_u32 v11, {YT}, v11"),
    I(f"s_and_b32 s{sT0}, s{sRR}, 1"), I(f"s_lshl3_add_u32 s{sT0}, s{sT0}, s{sW}"), I(f"s_lshl_b32 s{sT0}, s{sT0}, 6"),
    I(f"s_add_u32 s{sT0}, s{sT0}, {ST}"), I(f"v_lshl_add_u32 v12, v5, 3, s{sT0}"),
    I(f"ds_read_b64 {q(SR,2)}, v12", tag="sr"), I(f"ds_read_b64 {q(SR+2,2)}, v12 offset:256", tag="sr"),
    I("v_xor_b32 v7, v7, v6"), I(f"v_lshl_add_u32 v7, v7, 4, s{sPm0}"), I(f"v_and_b32 v2, 31, v{vLane}"),
    I(f"v_lshl_add_u32 v{vRW}, v2, 8, v7"), I(f"v_xor_b32 v{vRW+1}, 32, v{vRW}"), I(f"v_xor_b32 v{vRW+2}, 64, v{vRW}"), I(f"v_xor_b32 v{vRW+3}, 96, v{vRW}"),
    I(f"s_lshl_b32 s{sT0}, s{sW}, 13"), I(f"s_sub_u32 s{sT0}, s{sT0}, s{sPm0}"), I(f"s_add_u32 s{sT0}, s{sT0}, {HC}")] + \
    [I(f"v_add_u32 v{vRW+4+k}, s{sT0}, v{vRW+k}") for k in range(4)]
spread(slots, fin_setup, 46, 70)
Y_AT = opt("yat", 72)
ylds = [f"buffer_load_dwordx4 {q(YL)}, v3, {WS}, s{sD1} offen sc1", f"buffer_load_dwordx4 {q(YL+4)}, v4, {WS}, s{sD1} offen sc1"]
ymax = [f"v_max3_u32 v2, v{YL}, v{YL+1}, v{YL+2}", f"v_max3_u32 v5, v{YL+3}, v{YL+4}, v{YL+5}", f"v_max3_u32 v2, v2, v{YL+6}, v{YL+7}", "v_max_u32 v2, v2, v5", "v_cmp_eq_u32 vcc, -1, v2"]
slots[Y_AT] += [I(t, tag="yl") for t in ylds]
slow.append("\n".join(["Lyslow:", f"s_mov_b32 s{sSPIN}, 0", "Lyspin:"] + ylds + [f"s_add_u32 s{sSPIN}, s{sSPIN}, 1", "s_waitcnt vmcnt(0)"] + ymax +
                      [f"s_cmp_gt_u32 s{sSPIN}, 0x40000", "s_cbranch_scc1 Lyback", "s_cbranch_vccnz Lyspin", "s_branch Lyback"]))
xpre = []
for nt in (0, 1):
    for d in range(4):
        xpre += [I(f"v_lshlrev_b32 v{XF+8*nt+2*d}, 16, v{XR+4*nt+d}", needs=["xt"]), I(f"v_and_b32 v{XF+8*nt+2*d+1}, 0xffff0000, v{XR+4*nt+d}")]
    xpre += [I(f"v_fma_f32 v{XN+8*nt+d}, v{XF+8*nt+d}, v{SR+2*nt}, v{SR+2*nt+1}", needs=["sr"]) for d in range(8)]
spread(slots, xpre, 74, 86)
def red_writes(nt): return [I(f"ds_write_b128 v{vRW+4*nt+i}, {q(GA+32*nt+16*mt+4*i)} offset:{128*mt}", tag=("rw", nt)) for mt in (0, 1) for i in range(4)]
def red_reads(nt): return [I(f"ds_read_b128 {q(PR+8*w2+4*e)}, v{9+e} offset:{(12288 if nt == 0 else 8192)*w2}", tag=("rr", nt)) for w2 in range(4) for e in (0, 1)]
for k, wr in enumerate(red_writes(0)): slots[86 + (k * 3) // 2] += [wr]
slots[98] += [I(ymax[0], needs=["yl"])] + [I(t) for t in ymax[1:]]
slots[99] += [I("s_cbranch_vccnz Lyslow"), I("Lyback:"), I(f"ds_write_b128 v13, {q(YL)}", tag="yw")]
slots[101] += [I(f"ds_write_b128 v13, {q(YL+4)} offset:1024", tag="yw")]
slots[103] += [W("yw"), I("s_barrier")]
spread(slots, red_reads(0) + [I(f"ds_read_b32 v{YG+4*nt+jj}, v11 offset:{256*jj+128*nt}", tag="yg") for nt in (0, 1) for jj in range(4)], 103, 108)
spread(slots, [I(f"v_add_f32 v{PR+d}, v{PR+d}, v{PR+8+d}", needs=[("rr", 0)]) for d in range(8)] + [I(f"v_add_f32 v{PR+16+d}, v{PR+16+d}, v{PR+24+d}") for d in range(8)]
       + [I(f"v_add_u32 v9, {HC-PS}, v9"), I(f"v_add_u32 v10, {HC-PS}, v10")], 108, 112)
for k in (8, 24, 28, 54, 84, 97, 100): slots[k] += fstamp("late")
interleave(mf, slots)
P.emit(stamp())
T1 = 128
def s_mul(nt):
    o = []
    for d in range(4): o += [I(f"v_lshlrev_b32 v{XR+2*d}, 16, v{YG+4*nt+d}", needs=["yg"]), I(f"v_and_b32 v{XR+2*d+1}, 0xffff0000, v{YG+4*nt+d}")]
    return o + [I(f"v_pk_mul_f32 {q(XN+8*nt+d,2)}, {q(XN+8*nt+d,2)}, {q(XR+d,2)}") for d in range(0, 8, 2)]
def out_math(nt):
    o = [I(f"v_pk_add_f32 {q(PR+d,2)}, {q(PR+d,2)}, {q(PR+16+d,2)}") for d in range(0, 8, 2)]
    o += [I(f"v_mul_f32 v{T1+d}, 0xbfb8aa3b, v{PR+d}") for d in range(8)]
    o += [I(f"v_exp_f32 v{T1+d}, v{T1+d}") for d in range(8)]
    o += [I(f"v_pk_mul_f32 {q(XN+8*nt+d,2)}, {q(XN+8*nt+d,2)}, {q(PR+d,2)}") for d in range(0, 8, 2)]
    o += [I(f"v_pk_add_f32 {q(T1+d,2)}, {q(T1+d,2)}, 1.0 op_sel_hi:[1,0]") for d in range(0, 8, 2)]
    o += [I(f"v_rcp_f32 v{T1+d}, v{T1+d}") for d in range(8)]
    o += [I(f"v_pk_fma_f32 {q(XF+8*nt+d,2)}, {q(XN+8*nt+d,2)}, {q(T1+d,2)}, {q(XF+8*nt+d,2)}") for d in range(0, 8, 2)]
    o += [I(f"v_cvt_pk_bf16_f32 v{T1+8+4*nt+d}, v{XF+8*nt+2*d}, v{XF+8*nt+2*d+1}") for d in range(4)]
    o.append(I(f"buffer_store_dwordx4 {q(T1+8+4*nt)}, v8, {OUT}, s{[sD2, sD3][nt]} offen" + (" sc1" if opt("osc", 0) else ""), tag="ost"))
    return o
m0_ = s_mul(0) + out_math(0) + s_mul(1)
slots = [[] for _ in m0_]
spread(slots, red_writes(1), 8, len(m0_) - 10)
interleave(m0_, slots)
P.wait(("rw", 1)); P("s_barrier")
P.emit(red_reads(1))
P.wait(("rr", 1))
for d in range(0, 8, 2): P(f"v_pk_add_f32 {q(PR+d,2)}, {q(PR+d,2)}, {q(PR+8+d,2)}"); P(f"v_pk_add_f32 {q(PR+16+d,2)}, {q(PR+16+d,2)}, {q(PR+24+d,2)}")
P.emit(out_math(1))
if HOLD or PROBE: P.emit(stamp())
if PROBE:
    if len(PROBE) > 1: P(f"s_cmp_lg_u32 s2, {PROBE[1]}"); P("s_cbranch_scc1 Lend")
    P("s_lshl_b32 s28, s28, 2"); P("s_add_u32 s28, s28, 3000")
    P("Lhold:"); P("s_memrealtime s[16:17]", tag="stp"); P(f"s_sub_u32 s16, s16, s{sSTP}", needs=["stp"]); P("s_cmp_lt_u32 s16, s28"); P("s_cbranch_scc1 Lhold")
if STAMP:
    P.emit(stamp()); P.emit(stamp()); P.wait_all()
    P("s_memrealtime s[16:17]", tag="stp"); P("v_writelane_b32 v14, s54, 62"); P("v_writelane_b32 v14, s16, 63", needs=["stp"])
    P(f"s_lshl2_add_u32 s{sSTP}, s2, s{sW}"); P(f"s_lshl_b32 s{sSTP}, s{sSTP}, 8"); P(f"s_add_u32 s{sSTP}, s{sSTP}, {WS_STAMP}")
    P(f"v_lshlrev_b32 v15, 2, v{vLane}"); P(f"buffer_store_dword v14, v15, {WS}, s{sSTP} offen", tag="stpst")
    print("stamps:", nstamp[0] - 1)
P("Lend:"); P("s_endpgm")

HP = Prog(); H = HP
H("Lhelper:")
H(f"s_sub_u32 s{sRR}, s2, {NWG}")
H("v_lshlrev_b32 v9, 2, v7"); H("v_xor_b32 v9, v9, v6"); H("v_lshl_add_u32 v9, v9, 4, v8")
H(f"s_lshl2_add_u32 s{sT0}, s{sRR}, s{sW}"); H(f"s_mul_i32 s{sT1}, s{sT0}, {16*896}")
H(f"v_add_u32 v10, s{sT1}, v9"); H(f"v_add_u32 v11, {8*896-1024}, v10"); H(f"v_subrev_u32 v12, {8*896}, v10")
H(f"s_mul_i32 s{sPm0}, s{sW}, 5120"); H(f"v_lshlrev_b32 v9, 3, v{vLane}")
H.wait_all(vm=False)
if STAMP: H("s_mov_b32 s98, s54")
H.emit(srd(K, 18, 1835008)); H.emit(srd(V, 20, 1835008)); H.emit(srd(SH, 22, 3584)); H.emit(srd(DBG, 38, 256)); H.emit(srd(WS, 40, WS_SIZE))
TAP = 64; HTB = 143360
def kv_loads(cb):
    s = 20480 * cb
    H(f"s_add_u32 m0, s{sPm0}, {s}"); H(f"s_movk_i32 s{sD0}, {128*cb}")
    H(f"buffer_load_dwordx4 v12, {K}, s{sD0} offen lds", tag=("kv", cb))
    H(f"s_add_u32 m0, s{sPm0}, {s+1024}"); H(f"buffer_load_dwordx2 {q(TAP+2*cb,2)}, v9, {SH}, 0 offen offset:{512*cb}", tag=("kv", cb))
    H(f"buffer_load_dwordx4 v10, {K}, s{sD0} offen lds", tag=("kv", cb)); H(f"buffer_load_dwordx4 v11, {K}, s{sD0} offen offset:1024 lds", tag=("kv", cb))
    H(f"s_add_u32 m0, s{sPm0}, {s+3072}")
    H(f"buffer_load_dwordx4 v10, {V}, s{sD0} offen lds", tag=("kv", cb)); H(f"buffer_load_dwordx4 v11, {V}, s{sD0} offen offset:1024 lds", tag=("kv", cb))
kv_loads(0); kv_loads(1)
H(f"s_mul_i32 s{sT1}, s{sRR}, 7"); H(f"v_add_u32 v13, s{sT1}, v0"); H("v_lshlrev_b32 v13, 7, v13"); H(f"v_add_u32 v13, {WS_FLAG}, v13")
H("v_bfrev_b32 v14, 2"); H("v_cmp_gt_u32 vcc, 7, v0"); H("v_cndmask_b32 v13, v14, v13, vcc"); H("v_mov_b32 v15, 0")
H(f"s_lshl_b32 s{sT1}, s{sRR}, 3"); H(f"v_mov_b32 v2, s{sT1}"); H("v_cmp_eq_u32 vcc, 0, v0"); H(f"v_cndmask_b32 v{vFlag}, v14, v2, vcc")
H(f"v_and_b32 v2, 3, v{vLane}"); H(f"v_bfe_u32 v3, v{vLane}, 2, 2"); H(f"v_lshl_add_u32 v2, v2, 3, s{sPm0}"); H("v_lshl_add_u32 v2, v3, 7, v2")
H("v_and_b32 v3, 2, v3"); H(f"v_lshrrev_b32 v4, 4, v{vLane}"); H("v_xor_b32 v3, v3, v4"); H("v_lshl_add_u32 v16, v3, 5, v2")
H(f"s_lshl_b32 s{sT1}, s{sW}, 1"); H(f"v_xor_b32 v2, s{sT1}, v6"); H("v_lshlrev_b32 v2, 4, v2"); H(f"v_lshl_add_u32 v2, v{vLane}, 7, v2")
H(f"v_add_u32 v17, {HTB}, v2"); H("v_xor_b32 v18, 16, v17")
H("v_xor_b32 v2, v5, v6"); H("v_lshlrev_b32 v2, 4, v2"); H("v_lshl_add_u32 v2, v5, 7, v2")
H(f"s_lshl_b32 s{sT1}, s{sW}, 11"); H(f"s_add_u32 s{sT1}, s{sT1}, {HTB}"); H(f"v_add_u32 v19, s{sT1}, v2")
H("v_lshlrev_b32 v2, 4, v6"); H("v_lshl_add_u32 v20, v5, 12, v2"); H("v_add_u32 v21, 32768, v20")
H(f"s_lshl_b32 s{sD3}, s{sW}, 16"); H(f"s_lshl_b32 s{sT1}, s{sRR}, 7"); H(f"s_add_u32 s{sD3}, s{sD3}, s{sT1}")
TMP = 160; Wa, Wb, Wc, Wd_, We = 24, 25, 26, 27, 28
def kv_reads(cb):
    KD = 96 + 20 * (cb % 2); VD = KD + 10
    for b in range(5): H(f"ds_read_b64_tr_b16 {q(KD+2*b,2)}, v16 offset:{512*(b+1)}", needs=[("kv", cb)], tag=("kd", cb))
    for b in range(4): H(f"ds_read_b64_tr_b16 {q(VD+2*b,2)}, v16 offset:{3072+512*b}", tag=("kd", cb))
    H("v_add_u32 v16, 20480, v16")
def kv_out(cb):
    ob = 192 + 8 * cb
    H(f"buffer_store_dwordx4 {q(ob)}, v20, {WS}, s{sD3} offen sc1", needs=[("tr", cb)], tag="st"); H(f"buffer_store_dwordx4 {q(ob+4)}, v21, {WS}, s{sD3} offen sc1", tag="st")
    H(f"s_add_u32 s{sD3}, s{sD3}, 262144")
def sentinel(n):
    for k in range(n):
        H(f"buffer_store_dwordx4 v[80:83], v{vL16}, {WS}, s{sD2} offen offset:{1024*(k%2)} sc1", tag="st")
        if k % 2: H(f"s_add_u32 s{sD2}, s{sD2}, 2048")
kv_loads(2); kv_reads(0)
for cb in range(7):
    KD = 96 + 20 * (cb % 2); VD = KD + 10
    t0, t1 = TAP + 2*cb, TAP + 2*cb + 1; tb = 8192 * (cb % 2); ob = 192 + 8 * cb
    if cb < 2: kv_loads(3 + 2*cb); kv_loads(4 + 2*cb)
    H(f"v_alignbit_b32 v{Wa}, v{t1}, v{t1}, 16"); H(f"v_alignbit_b32 v{Wb}, v{t0}, v{t0}, 16")
    H(f"v_and_b32 v{Wc}, 0xffff0000, v{t1}"); H(f"v_and_b32 v{We}, 0xffff, v{t0}"); H(f"v_alignbit_b32 v{Wd_}, v{Wb}, v{Wa}, 16")
    H.wait(("kd", cb))
    for d in range(8): H(f"v_dot2_f32_bf16 v{TMP+2*d}, v{KD+d}, v{Wc}, 0"); H(f"v_dot2_f32_bf16 v{TMP+2*d+1}, v{KD+d+1}, v{Wa}, 0")
    if cb >= 2: kv_out(cb - 2)
    if cb == 2: H(f"buffer_store_dword v15, v13, {WS}, 0 offen sc1", tag="st")
    for d in range(8): H(f"v_dot2c_f32_bf16 v{TMP+2*d}, v{KD+d+1}, v{Wd_}"); H(f"v_dot2c_f32_bf16 v{TMP+2*d+1}, v{KD+d+2}, v{Wb}")
    for d in range(8): H(f"v_dot2c_f32_bf16 v{TMP+2*d}, v{KD+d+2}, v{We}")
    for d in range(8): H(f"v_lshlrev_b32 v{TMP+16+2*d}, 16, v{VD+d}"); H(f"v_and_b32 v{TMP+17+2*d}, 0xffff0000, v{VD+d}")
    if cb == 6: kv_out(5)
    if cb < 6: kv_reads(cb + 1)
    for d in range(8): H(f"v_pk_mul_f32 {q(TMP+2*d,2)}, {q(TMP+2*d,2)}, {q(TMP+16+2*d,2)}")
    for d in range(8): H(f"v_cvt_pk_bf16_f32 v{152+d}, v{TMP+2*d}, v{TMP+2*d+1}")
    H(f"ds_write_b128 v17, {q(152)} offset:{tb}", tag="tw"); H(f"ds_write_b128 v18, {q(156)} offset:{tb}", tag="tw")
    H.wait("tw"); H("s_barrier")
    H(f"ds_read_b128 {q(ob)}, v19 offset:{tb}", tag=("tr", cb)); H(f"ds_read_b128 {q(ob+4)}, v19 offset:{tb+1024}", tag=("tr", cb))
kv_out(6)
H.wait_all(); H("s_barrier")
H("v_mov_b32 v2, 1"); H(f"buffer_store_dword v2, v{vFlag}, {DBG}, 0 offen sc1", tag="st")
if STAMP:
    H(f"s_lshl_b32 s{sSTP}, s2, 2"); H(f"s_add_u32 s{sSTP}, s{sSTP}, s{sW}"); H(f"s_lshl_b32 s{sSTP}, s{sSTP}, 8"); H(f"s_add_u32 s{sSTP}, s{sSTP}, {WS_STAMP}")
    H(f"v_cmp_eq_u32 vcc, 0, v{vLane}"); H("v_cndmask_b32 v15, v14, 0, vcc")
    H("v_mov_b32 v13, s98"); H(f"buffer_store_dword v13, v15, {WS}, s{sSTP} offen offset:248", tag="st")
    H("s_memrealtime s[16:17]", tag="stp"); H("v_mov_b32 v12, s16", needs=["stp"]); H(f"buffer_store_dword v12, v15, {WS}, s{sSTP} offen offset:252", tag="st")
H("s_endpgm")

ins, added = pad_hazards(P.out)
for i in ins: i.t = i.t.replace("NLINES", "200")
hins, _ = pad_hazards(HP.out)
tmp = ins + [I(l) for s in slow for l in s.splitlines()] + hins
total, mis = align8(tmp, opt('nopc', 6))
nl = min(255, (total - 64) // 128)
assert nl > 64
body = "\n".join(("" if i.t.endswith(":") else "    ") + i.t.replace("v_min_u32 v2, 200, v2", f"v_min_u32 v2, {nl}, v2") for i in tmp)
hdr = open(f"cdna_kernels/{NAME}.s.ref").read().split("; Override launch")[0]
txt = hdr + f"""; @launch grid=({NGRID},1,1) block=(256,1,1) lds={LDS_SIZE}
; generated by gen/gen.py (hand-written schedule): one persistent launch, 224 GEMM/conv workgroups + 32 helper workgroups
;   kv = shiftconv(k)*v -> GEMM1 (gate/up, LayerNorm folded in) -> Toeplitz-MFMA long conv -> GEMM2 + output gate
.amdgcn_target "amdgcn-amd-amdhsa--gfx950"
.text
.globl {NAME}_kernel
.p2align 8
.type {NAME}_kernel,@function
{NAME}_kernel:
{body}
.section .rodata,"a"
.p2align 6
.amdhsa_kernel {NAME}_kernel
  .amdhsa_next_free_vgpr 512
  .amdhsa_next_free_sgpr 102
  .amdhsa_accum_offset 256
  .amdhsa_group_segment_fixed_size 0
  .amdhsa_kernarg_size 104
  .amdhsa_user_sgpr_count 2
  .amdhsa_user_sgpr_kernarg_segment_ptr 1
  .amdhsa_system_sgpr_workgroup_id_x 1
  .amdhsa_float_denorm_mode_32 3
.end_amdhsa_kernel
"""
open(OUTP, "w").write(txt)
print(f"{OUTP}: {len(tmp)} lines, {total} bytes, nop states added {added}, misaligned 8B {mis}")
```

```python
import sys, os
sys.path.insert(0, os.path.dirname(os.path.abspath(__file__)))
from asmlib import *

NAME = "recurrent_scan__ssm_conv_h3__swiglu_ffn__prompt"
STAMP = "--stamp" in sys.argv
FINE = "--fine" in sys.argv
HOLD = [a[7:] for a in sys.argv if a.startswith("--hold=")]
HOLD = tuple(int(x) for x in HOLD[0].split(":")) if HOLD else None
PROBE = [a[8:] for a in sys.argv if a.startswith("--probe=")]
PROBE = PROBE[0].split(":") if PROBE else None
def probe(name):
    if not PROBE or PROBE[0] != name: return []
    return [I("s_memrealtime s[28:29]", tag="stp"), I(f"s_sub_u32 s28, s28, s{sSTP}", needs=["stp"])]
OUTP = [a for a in sys.argv[1:] if not a.startswith("--")]
OUTP = OUTP[0] if OUTP else f"cdna_kernels/{NAME}.s"

NWG = 224; NGRID = 256
WS_KVT = 0; WS_Y = 2 << 20; WS_H = 4 << 20; WS_FLAG = 11 << 20; WS_STAMP = 12 << 20; WS_SIZE = 16 << 20
WR = 0; PS = 65536; HC = 114688; UB = 147968; ST = 157184; CS = 158720; YT = UB; LDS_SIZE = 159744
assert CS % 1024 == 0
sW, sR_, sCB, sRR, sF = 3, 4, 5, 6, 7
sXO = 8
sT0, sT1, sT2 = 15, 42, 43
X, K, V, SH, SK, WG, WU, WD, OUT, DBG, WS = (f"s[{b}:{b+3}]" for b in range(44, 88, 4))
sWm0, sPm0, sONE, sD0, sD1, sD2, sD3 = 88, 89, 90, 91, 92, 93, 94
sHS = 96
sSPIN = 95; sDD = 100; sSTP = 101
vLane = 1
vWA = 16; vWg = 20; vWu = 22; vXd = 24; vXr = 28; vL16 = 32; vWdD = 33; vWdR = 35
vFlag = 37; vP1 = 38; vP2 = 39; vPoll = 40; vS = 41; vQ = 43; vC = 45; vC1 = 47; vC2 = 48
vCA = 49; vCB = 50; vCS = 51; vBX = 52
vFlagW = 0
vF0 = 56
vF1 = 72
vXT = 96; vAX = 112; ACC = [128, 192]
def q(b, n=4, k="v"): return f"{k}[{b}:{b+n-1}]"
def wfrag(ks, j): return vF0 + 4 * (ks % 4) if j == 0 else vF1 + 12 * (ks % 2) + 4 * (j - 1)

P = Prog()
slow = []
nstamp = [0]
def stamp():
    if PROBE:
        n = nstamp[0]; nstamp[0] += 1
        return probe(f"s{n}")
    if HOLD:
        n = nstamp[0]; nstamp[0] += 1
        if n != HOLD[0]: return []
        return [I("Lhold:"), I("s_memrealtime s[16:17]", tag="stp"), I(f"s_sub_u32 s16, s16, s{sSTP}", needs=["stp"]),
                I(f"s_cmp_lt_u32 s16, {HOLD[1]}"), I("s_cbranch_scc1 Lhold")]
    if not STAMP: return []
    n = nstamp[0]; nstamp[0] += 1
    return [I(f"v_writelane_b32 v14, s52, {n-1}", needs=["stp"]), I("s_memtime s[52:53]", tag="stp")]
def fstamp(kind):
    return stamp() if (STAMP and kind in OPTS) else []
OPTS = [a[2:] for a in sys.argv if a.startswith("--")]

def srd(name, lo, size):
    b = int(name[2:name.index(":")])
    return [f"s_mov_b32 s{b}, s{lo}", f"s_and_b32 s{b+1}, s{lo+1}, 0xffff", f"s_mov_b32 s{b+2}, {size}", f"s_mov_b32 s{b+3}, 0x20000"]

def interleave(mf, fillers):
    for m, fl in zip(mf, fillers):
        P.emit(m); P.emit(fl)

def spread(slots, items, lo=0, hi=None):
    hi = len(slots) if hi is None else hi
    n = hi - lo
    for k, it in enumerate(items):
        s = lo + (k * n) // len(items)
        slots[s].extend(it if isinstance(it, list) else [it])

def poll_ld(voff, stage):
    if stage == 0: return f"buffer_load_dword v{vPoll}, off, {DBG}, 0 sc1"
    return f"buffer_load_dword v{vPoll}, v{voff}, {WS}, 0 offen sc1"
def poll_issue(voff, stage, tag): return I(poll_ld(voff, stage), tag=tag)
def poll_check(voff, stage, tag, thr=None):
    n = len(slow); thr = thr or stage
    slow.append(f"""Lslow{n}:
    s_mov_b32 s{sSPIN}, 0
Lspin{n}:
    s_sleep {8 if stage <= 1 else 1}
    {poll_ld(voff, stage)}
    s_add_u32 s{sSPIN}, s{sSPIN}, 1
    s_waitcnt vmcnt(0)
    v_cmp_gt_u32 vcc, {thr}, v{vPoll}
    s_cmp_gt_u32 s{sSPIN}, 0x40000
    s_cbranch_scc1 Lback{n}
    s_cbranch_vccnz Lspin{n}
    s_branch Lback{n}""")
    return [I(f"v_cmp_gt_u32 vcc, {thr}, v{vPoll}", needs=[tag]), I(f"s_mov_b32 s{sSPIN}, 0"), I(f"s_cbranch_vccnz Lslow{n}"), I(f"Lback{n}:")] + \
           ([I(f"v_writelane_b32 v14, s{sSPIN}, {50+n}")] if STAMP else [])
def flag_store(stage):
    return [I(f"v_mov_b32 v2, {stage}"), I(f"buffer_store_dword v2, v{vFlagW}, {WS}, 0 offen sc1", tag=f"flag{stage}")]

OPT = dict(a[2:].split("=") for a in sys.argv if a.startswith("--") and "=" in a and not a.startswith(("--hold", "--probe")))
def opt(k, d): return int(OPT.get(k, d))
qs = []
def qstamp():
    if "pro2" not in OPTS: return
    r = [56, 58, 60, 62, 72, 74, 76, 78, 80, 82, 84, 86][len(qs)]; qs.append(r); P(f"s_memtime s[{r}:{r+1}]", tag="qs")
P("s_cmp_ge_u32 s2, %d" % NGRID); P("s_cbranch_scc1 Lend")
if HOLD or PROBE: P("s_memrealtime s[98:99]", tag="ka")
if STAMP: P("s_memtime s[52:53]", tag="stp"); P("s_memrealtime s[54:55]", tag="ka")
nstamp[0] += 1
P("s_load_dwordx16 s[16:31], s[0:1], 0", tag="ka"); P("s_load_dwordx8 s[32:39], s[0:1], 64", tag="ka"); P("s_load_dwordx2 s[40:41], s[0:1], 96", tag="ka")
P("s_getpc_b64 s[42:43]"); P("s_and_b32 s8, s2, 0xf8")
P("v_cmp_gt_u32 vcc, 8, v0"); P("s_and_saveexec_b64 s[10:11], vcc"); P("s_cbranch_execz Lnopf")
P("v_add_u32 v2, s8, v0"); P("v_min_u32 v2, NLINES, v2"); P("v_lshlrev_b32 v2, 7, v2"); P("v_mov_b32 v3, s43")
P("v_add_co_u32 v2, vcc, s42, v2"); P("v_addc_co_u32 v3, vcc, 0, v3, vcc")
P.out.append(I("global_load_dword v250, v[2:3], off"))
P("Lnopf:"); P("s_mov_b64 exec, s[10:11]")
P(f"v_and_b32 v{vLane}, 63, v0"); P("v_lshrrev_b32 v5, 6, v0"); P(f"v_readfirstlane_b32 s{sW}, v5")
P(f"v_lshrrev_b32 v5, 3, v{vLane}"); P(f"v_and_b32 v6, 7, v{vLane}"); P(f"v_bfe_u32 v7, v{vLane}, 4, 1")
P(f"v_lshlrev_b32 v{vL16}, 4, v{vLane}"); P("v_mul_u32_u24 v8, 896, v5")
P(f"s_cmp_ge_u32 s2, {NWG}"); P("s_cbranch_scc1 Lhelper"); qstamp()
P("s_and_b32 s8, s2, 7"); P("s_lshr_b32 s9, s2, 3")
P("s_mul_i32 s10, s9, 37"); P("s_lshr_b32 s10, s10, 8")
P("s_mul_i32 s11, s10, 7"); P(f"s_sub_u32 s{sCB}, s9, s11")
P("s_lshr_b32 s11, s8, 1"); P("s_and_b32 s12, s8, 1")
P(f"s_lshl2_add_u32 s{sR_}, s11, s10"); P(f"s_lshl1_add_u32 s{sRR}, s{sR_}, s12")
P(f"s_mul_i32 s{sF}, s12, 7"); P(f"s_add_u32 s{sF}, s{sF}, s{sCB}")
P(f"s_lshl_b32 s{sWm0}, s{sW}, 12"); P(f"s_mul_i32 s{sPm0}, s{sW}, 12288"); P(f"s_add_u32 s{sPm0}, s{sPm0}, {PS}")
P(f"s_lshl2_add_u32 s9, s{sR_}, s{sW}"); P(f"s_mul_i32 s{sT0}, s9, {32*896}")
P(f"v_lshrrev_b32 v9, 4, v{vLane}"); P("v_xor_b32 v9, v9, v6"); P("v_lshlrev_b32 v9, 4, v9")
P(f"v_add3_u32 v{vXd}, v8, v9, s{sT0}"); P("v_xor_b32 v9, 64, v9"); P(f"v_add3_u32 v9, v8, v9, s{sT0}")
P(f"v_add_u32 v{vXd+1}, {8*896-1024}, v9"); P(f"v_add_u32 v{vXd+2}, {16*896-2048}, v{vXd}"); P(f"v_add_u32 v{vXd+3}, {24*896-3072}, v9")
qstamp()
P(f"s_mul_i32 s{sT0}, s{sW}, {16*3584}"); P(f"s_lshl_b32 s10, s{sF}, 8"); P(f"s_add_u32 s{sT0}, s{sT0}, s10")
P(f"v_lshl_add_u32 v13, v8, 2, s{sT0}")
P("v_lshlrev_b32 v9, 1, v7"); P("v_xor_b32 v9, v9, v6")
P(f"v_lshl_add_u32 v{vWg}, v9, 4, v13"); P(f"v_xor_b32 v{vWu}, 64, v{vWg}")
P(f"v_add_u32 v{vWg+1}, {8*3584-1024}, v{vWg}"); P(f"v_add_u32 v{vWu+1}, {8*3584-1024}, v{vWu}")
for nm, sz in ((X, 1835008), (WG, 1605632), (WU, 1605632 + 2048)): P.emit(srd(nm, 0, sz)[2:])
qstamp(); P.wait("ka"); qstamp()
if HOLD or PROBE: P(f"s_mov_b32 s{sSTP}, s98")
P.emit(probe("ka")); P.emit(fstamp("pro"))
if opt("tlb", 3):
    ptrs = [16, 30, 32, 34, 24, 40, 36][:opt("tlb", 3)]
    P("v_mov_b32 v2, s16"); P("v_mov_b32 v3, s17")
    for k, lo in enumerate(ptrs[1:]): P(f"v_writelane_b32 v2, s{lo}, {k+1}"); P(f"v_writelane_b32 v3, s{lo+1}, {k+1}")
    P(f"s_mov_b64 exec, {(1 << len(ptrs)) - 1}"); P("global_load_dword v249, v[2:3], off", tag="t"); P("s_mov_b64 exec, -1")
for nm, lo in ((X, 16), (WG, 30)): P.emit(srd(nm, lo, 0)[:2])
P("s_sub_u32 s68, s32, 2048"); P("s_subb_u32 s69, s33, 0")

sXS = 8
def x_loads(c):
    s = c % 3
    return [[I(f"s_add_u32 m0, s{sPm0}, {4096*s}"), I(f"s_movk_i32 s{sXS}, {128*c}"), I(f"buffer_load_dwordx4 v{vXd}, {X}, s{sXS} offen lds", tag=("x", c))]] + \
           [I(f"buffer_load_dwordx4 v{vXd+i}, {X}, s{sXS} offen offset:{1024*i} lds", tag=("x", c)) for i in (1, 2, 3)]
def w_loads(c):
    s = c % 4
    return [[I(f"s_add_u32 m0, s{sWm0}, {WR+16384*s}"), I(f"s_mov_b32 s{sD0}, {(c%7)*229376 + (c//7)*128}"),
             I(f"buffer_load_dwordx4 v{vWg}, {WG}, s{sD0} offen lds", tag=("w", c))],
            I(f"buffer_load_dwordx4 v{vWg+1}, {WG}, s{sD0} offen offset:1024 lds", tag=("w", c)),
            I(f"buffer_load_dwordx4 v{vWu}, {WU}, s{sD0} offen offset:2048 lds", tag=("w", c)),
            I(f"buffer_load_dwordx4 v{vWu+1}, {WU}, s{sD0} offen offset:3072 lds", tag=("w", c))]
qstamp()
for k, it in enumerate(w_loads(0) + x_loads(0)):
    P.emit(it)
    if k in (0, 1, 3, 5, 7): qstamp()
P.emit(fstamp("pro"))
P(f"v_and_b32 v2, 3, v{vLane}"); P(f"v_bfe_u32 v3, v{vLane}, 2, 2"); P(f"v_lshrrev_b32 v9, 5, v{vLane}"); P(f"v_and_b32 v12, 31, v{vLane}")
P("v_lshlrev_b32 v10, 3, v2"); P("v_lshl_add_u32 v10, v3, 7, v10"); P("v_lshrrev_b32 v11, 1, v3")
P("v_lshl_add_u32 v4, v7, 11, v10"); P("v_lshl_add_u32 v4, v9, 10, v4")
P("v_lshl_add_u32 v13, v7, 1, v11"); P(f"v_xor_b32 v13, s{sW}, v13")
P(f"v_lshl_add_u32 v{vWA}, v13, 5, v4")
for j in (1, 2, 3): P(f"v_xor_b32 v{vWA+j}, {32*j}, v{vWA}")
P(f"v_bfe_u32 v13, v{vLane}, 1, 3"); P("v_xor_b32 v13, v13, v9"); P(f"v_lshl_add_u32 v13, v13, 4, s{sPm0}")
P(f"v_lshl_add_u32 v{vXr}, v12, 7, v13")
for j in (1, 2, 3): P(f"v_xor_b32 v{vXr+j}, {32*j}, v{vXr}")
P(f"s_mov_b32 s{sONE}, 0x3f803f80")
qstamp(); P.emit(w_loads(1)); P.emit(x_loads(1)); qstamp(); P.emit(fstamp("pro"))
sPAIR = 48; sHB = 49; sHE = 50; sYS = 51; sRW = 9; sF8 = 10; vDD = 15
EX16, EXALL = I("s_mov_b64 exec, 0xffff"), I("s_mov_b64 exec, -1")
def ex(l): return [I("s_mov_b64 exec, 0xffff")] + l + [I("s_mov_b64 exec, -1")]
touch1 = [I(f"s_lshl2_add_u32 s{sT0}, s{sF}, s{sW}"), I(f"s_mul_i32 s{sT0}, s{sT0}, 12"), I(f"v_min_u32 v4, 11, v{vLane}"), I(f"v_add_u32 v4, s{sT0}, v4"),
          I("v_min_u32 v4, 639, v4"), I("v_and_b32 v13, 127, v4"), I("v_and_b32 v4, 0x380, v4"), I("v_mul_u32_u24 v13, 896, v13"), I("v_add_u32 v4, v4, v13"),
          I(f"s_mul_i32 s{sT0}, s{sR_}, {128*896}"), I(f"s_mul_i32 s{sT1}, s{sRW}, {5*3584}"), I(f"s_add_u32 s{sT1}, s{sT1}, s{sF8}"), I(f"s_add_u32 s{sT1}, s{sT1}, {128*3584}"),
          I(f"v_min_u32 v13, 4, v{vLane}"), I("v_mul_u32_u24 v13, 3584, v13")] + \
         ex([I(f"buffer_load_dword v246, v4, {X}, s{sT0} offen offset:256", tag="t"), I(f"buffer_load_dword v247, v13, {WG}, s{sT1} offen", tag="t"), I(f"buffer_load_dword v248, v13, {WU}, s{sT1} offen offset:2048", tag="t")])
touch2 = [[I(f"s_mul_i32 s11, s{sRW}, {7*3584}"), I(f"s_add_u32 s11, s11, s{sF8}"), I(f"v_min_u32 v244, 6, v{vLane}"), I("v_mul_u32_u24 v244, 3584, v244")],
          ex([I(f"buffer_load_dword v251, v244, {WG}, s11 offen offset:128", tag="t"), I(f"buffer_load_dword v252, v244, {WU}, s11 offen offset:2176", tag="t")])]
touch3 = [[I(f"s_lshl2_add_u32 s12, s{sRR}, s{sW}"), I(f"s_mul_i32 s12, s12, {14*896}"), I(f"s_lshl_b32 s13, s{sCB}, 7"), I("s_add_u32 s12, s12, s13")],
          [I(f"v_min_u32 v245, 13, v{vLane}"), I("v_mul_u32_u24 v245, 896, v245"), I(f"s_lshl_b32 s13, s{sW}, 11"), I(f"s_add_u32 s13, s13, s{sPAIR}"), I(f"v_lshlrev_b32 v243, 7, v{vLane}")],
          ex([I(f"buffer_load_dword v253, v245, {WD}, s12 offen", tag="t"), I(f"buffer_load_dword v254, v243, {SK}, s13 offen", tag="t")])]
T1_, T2_, T3_ = opt("t1", 1), opt("t2", 1), opt("t3", 2)
early = [I(t) for t in srd(SK, 24, 1835008) + srd(WD, 34, 1605632)] + [I(f"s_lshl_b32 s14, s{sCB}, 5"), I(f"s_add_u32 s14, s14, s{sRR}"), I(f"s_lshl_b32 s{sPAIR}, s14, 13")]
if T1_: P.emit(touch1)
if T2_ < 0: P.emit(touch2)
if T3_ < 0: P.emit(early); P.emit(touch3); early = []
P.emit(fstamp("pro"))
P.wait(("x", 0)); P("s_barrier")
if qs:
    P("v_writelane_b32 v14, s52, 0", needs=["qs"])
    for r in qs[:-1]: P(f"v_writelane_b32 v14, s{r}, {nstamp[0]}"); nstamp[0] += 1
    P(f"s_mov_b32 s52, s{qs[-1]}"); nstamp[0] += 1
P.emit(stamp())
C = Prog(); C.known = {"z"}
for i in early: C.out.append(i)
for t in srd(WS, 40, WS_SIZE) + srd(OUT, 36, 1835008) + srd(DBG, 38, 256): C(t)
C(f"s_lshl_b32 s{sT1}, s14, 2"); C(f"v_mov_b32 v13, s{sT1}"); C(f"global_load_dword v{vDD}, v13, s[26:27]", tag="dd")
C(f"s_lshl_b32 s{sT0}, s14, 7"); C(f"s_add_u32 s{sT0}, s{sT0}, {WS_FLAG}")
C(f"v_mov_b32 v4, s{sT0}"); C("v_cmp_eq_u32 vcc, 0, v0"); C("v_bfrev_b32 v13, 2"); C(f"v_lshlrev_b32 v{vP1}, 7, v12"); C(f"v_add_u32 v{vP1}, {WS_FLAG + 224*128}, v{vP1}"); C(f"v_cndmask_b32 v{vFlagW}, v13, v4, vcc")
C(f"v_min_u32 v4, 13, v12"); C("v_lshrrev_b32 v13, 1, v4"); C("v_lshlrev_b32 v13, 5, v13"); C("v_and_b32 v4, 1, v4")
C(f"s_lshl_b32 s{sT1}, s{sR_}, 1"); C(f"v_add3_u32 v4, v13, v4, s{sT1}"); C(f"v_lshlrev_b32 v4, 7, v4"); C(f"v_add_u32 v{vP2}, {WS_FLAG}, v4")
C("v_lshlrev_b32 v4, 2, v7"); C("v_xor_b32 v4, v4, v6"); C("v_lshl_add_u32 v4, v4, 4, v8")
C(f"s_lshl_b32 s{sT0}, s{sCB}, 7"); C(f"s_mul_i32 s{sT1}, s{sW}, {16*896}"); C(f"s_add_u32 s{sT0}, s{sT0}, s{sT1}")
C(f"v_add_u32 v{vWdD}, s{sT0}, v4"); C(f"v_add_u32 v{vWdD+1}, {8*896-1024}, v{vWdD}")
C("v_lshl_add_u32 v4, v9, 9, v10"); C("v_lshl_add_u32 v13, v11, 1, v7"); C("v_lshl_add_u32 v4, v13, 5, v4")
C(f"v_add_u32 v{vWdR}, s{sPm0}, v4"); C(f"v_xor_b32 v{vWdR+1}, 64, v{vWdR}")
C(f"s_lshr_b32 s{sT0}, s{sW}, 1"); C(f"s_and_b32 s{sT1}, s{sW}, 1")
C(f"s_mul_i32 s{sD2}, s{sT0}, 16640"); C(f"s_mul_i32 s{sHE}, s{sT1}, 8320"); C(f"s_add_u32 s{sHE}, s{sHE}, s{sD2}"); C(f"s_add_u32 s{sHE}, s{sHE}, {HC+48}")
C(f"s_lshl_b32 s{sHB}, s{sT0}, 12"); C(f"s_add_u32 s{sHB}, s{sHB}, s{sPAIR}"); C(f"s_lshl_b32 s{sT2}, s{sT1}, 2"); C(f"s_sub_u32 s{sHB}, s{sHB}, s{sT2}"); C(f"s_add_u32 s{sHB}, s{sHB}, 16")
C(f"s_lshl_b32 s{sT1}, s{sT1}, 8")
C(f"s_add_u32 s{sD2}, s{sD2}, s{sT1}"); C(f"s_add_u32 s{sD2}, s{sD2}, {HC+56}")
C(f"s_mul_i32 s{sD1}, s{sT0}, 4608"); C(f"s_sub_u32 s{sD1}, s{sD1}, s{sT1}"); C(f"s_add_u32 s{sD1}, s{sD1}, {UB+288}")
C(f"v_and_b32 v4, 48, v{vLane}")
C("v_mul_u32_u24 v13, 4160, v3"); C("v_lshl_add_u32 v13, v2, 3, v13"); C("v_sub_u32 v13, v13, v4"); C(f"v_add_u32 v{vCA}, s{sD2}, v13")
C(f"v_and_b32 v13, 15, v{vLane}"); C("v_lshl_add_u32 v13, v13, 5, v4"); C(f"v_add_u32 v{vCB}, s{sD1}, v13")
C(f"s_lshl_b32 s{sT0}, s{sW}, 8"); C(f"s_add_u32 s{sT0}, s{sT0}, {CS}"); C(f"v_lshl_add_u32 v{vCS}, v{vLane}, 2, s{sT0}")
C(f"s_mul_i32 s{sT0}, s{sRW}, 114688")
C(f"s_lshl_b32 s{sT1}, s{sF}, 13"); C(f"s_add_u32 s{sT0}, s{sT0}, s{sT1}"); C(f"s_lshl_b32 s{sT1}, s{sW}, 10"); C(f"s_add_u32 s{sT0}, s{sT0}, {WS_H}"); C(f"s_add_u32 s{sHS}, s{sT0}, s{sT1}")
for j in (1, 2, 3): C(f"s_xor_b32 s{sHS+j}, s{sHS}, {1024*j}")
C(f"s_lshl1_add_u32 s{sYS}, s{sT1}, s{sPAIR}"); C(f"s_add_u32 s{sYS}, s{sYS}, {WS_Y}")
for r in list(range(vBX+1, vBX+4)) + list(range(vAX, vAX+16)): C(f"v_mov_b32 v{r}, 0")
for k in range(4): C(f"v_mov_b32 v{192+k}, -1")
C(f"v_mul_u32_u24 v13, 4608, v9"); C(f"v_lshl_add_u32 v13, v12, 4, v13"); C(f"v_add_u32 v13, {UB}, v13")
C(f"ds_write_b128 v13, {q(vAX)}", tag="z")
C(f"v_mul_u32_u24 v13, 4160, v5"); C(f"v_lshl_add_u32 v13, v6, 2, v13"); C(f"v_add_u32 v13, {HC}, v13")
C(f"ds_write_b32 v13, v{vAX}", tag="z")
C("v_lshlrev_b32 v10, 1, v2"); C("v_sub_u32 v10, v10, v3"); C("v_lshlrev_b32 v10, 1, v10")
C(f"v_bfe_u32 v11, v{vLane}, 2, 3"); C("v_mul_u32_u24 v11, 4160, v11"); C("v_lshl_add_u32 v11, v2, 2, v11"); C(f"v_add_u32 v11, {HC+32}, v11")
C("v_max_i32 v12, 0, v10"); C("v_lshl_add_u32 v12, v7, 12, v12")
cslots = [[] for _ in range(112)]; spread(cslots, C.out, 0, 72)

def w_reads(c, ks, js=(0, 1, 2, 3)):
    o = []
    for j in js:
        for h in (0, 1):
            o.append(I(f"ds_read_b64_tr_b16 {q(wfrag(ks, j)+2*h, 2)}, v{vWA+j} offset:{WR+16384*(c%4)+4096*ks+512*h}", tag=("wf", c, ks, j)))
    return o
def x_reads(c, ks):
    off = 4096 * (c % 3)
    return [I(f"ds_read_b128 {q(16*c+4*ks, 4, 'a')}, v{vXr+ks} offset:{off}", tag=("xf", c, ks)),
            I(f"ds_read_b128 {q(vXT+4*ks)}, v{vXr+ks} offset:{off}", tag=("xt", c, ks))]
def g1_mfma(c, ks, j):
    a = ACC[c // 7] + 16 * j; cc = c % 7
    src = "0" if (cc == 0 and ks == 0) else q(a, 16)
    needs = [("wf", c, ks, 3 if (c or ks) else j)] + ([("xf", c, ks)] if c < 7 else [])
    return I(f"v_mfma_f32_32x32x16_bf16 {q(a,16)}, {q(wfrag(ks,j))}, {q(16*cc+4*ks,4,'a')}, {src}", needs=needs)
WDW = {7: ("wr", 2), 8: ("wr", 3), 9: ("ps", 2), 10: ("wr", 0), 11: ("ps", 0), 12: ("wr", 1), 13: ("ps", 1)}
def wd_where(u): return WDW[u] if u >= 7 else ("ps", (4 + u) % 3)
vWdD2 = vXd + 2
def wd_loads(u):
    kind, s = wd_where(u); st = 2 * u; g, f2 = st // 14, st % 14
    m0 = f"s_add_u32 m0, s{sPm0}, {4096*s}" if kind == "ps" else f"s_add_u32 m0, s{sWm0}, {WR+16384*s}"
    o = [I(f"buffer_load_dwordx4 v{r}, {WD}, s{sD1} offen offset:{1024*k} lds", tag=("wd", u)) for k, r in enumerate((vWdD, vWdD+1, vWdD2, vWdD2+1))]
    return [[I(m0), I(f"s_mov_b32 s{sD1}, {(128*f2+64*g)*896}"), o[0]]] + o[1:]
def wd_reg(st, mt): return (112 + 8 * st if st < 14 else 8 * (st - 14)) + 4 * mt
vWdR2 = vXd
def wd_reads(u):
    kind, s = wd_where(u); o = []
    for k in (0, 1):
        for mt in (0, 1):
            for h in (0, 1):
                ar, off = (vWdR, 4096 * s) if kind == "ps" else (vWdR2, 16384 * s)
                o.append(I(f"ds_read_b64_tr_b16 {q(wd_reg(2*u+k, mt)+2*h, 2, 'a')}, v{ar+mt} offset:{off+2048*k+1024*h}", needs=[("wd", u)], tag=("wdf", u)))
    return o
def silu_tile(g, j, packed, T, t=None):
    a = ACC[g] + 16 * j; o = []
    if packed:
        o += [I(f"v_pk_mul_f32 {q(t+d,2)}, {q(a+d,2)}, {q(vC1-1,2)} op_sel:[0,1] op_sel_hi:[1,1]") for d in range(0, 8, 2)]
        o += [I(f"v_exp_f32 v{t+d}, v{t+d}") for d in range(8)]
        o += [I(f"v_pk_mul_f32 {q(a+8+d,2)}, {q(a+d,2)}, {q(a+8+d,2)}") for d in range(0, 8, 2)]
        o += [I(f"v_pk_fma_f32 {q(t+d,2)}, {q(t+d,2)}, {q(vC2,2)}, {q(vC2,2)} op_sel_hi:[1,0,0]") for d in range(0, 8, 2)]
        o += [I(f"v_rcp_f32 v{t+d}, v{t+d}") for d in range(8)]
        o += [I(f"v_pk_mul_f32 {q(a+8+d,2)}, {q(a+8+d,2)}, {q(t+d,2)}") for d in range(0, 8, 2)]
        o += [I(f"v_cvt_pk_bf16_f32 v{T+p}, v{a+8+2*p}, v{a+9+2*p}") for p in range(4)]
    else:
        for p in range(4):
            g0, g1, u0, u1 = a+2*p, a+2*p+1, a+8+2*p, a+9+2*p
            t0, t1 = T + 4 + 2*(p % 2), T + 5 + 2*(p % 2)
            o += [I(f"v_mul_f32 v{t0}, v{vC1}, v{g0}"), I(f"v_mul_f32 v{t1}, v{vC1}, v{g1}"),
                  I(f"v_exp_f32 v{t0}, v{t0}"), I(f"v_mul_f32 v{u0}, v{g0}, v{u0}"), I(f"v_exp_f32 v{t1}, v{t1}"),
                  I(f"v_fma_f32 v{t0}, v{t0}, v{vC2}, v{vC2}"), I(f"v_mul_f32 v{u1}, v{g1}, v{u1}"), I(f"v_rcp_f32 v{t0}, v{t0}"),
                  I(f"v_fma_f32 v{t1}, v{t1}, v{vC2}, v{vC2}"), I(f"v_rcp_f32 v{t1}, v{t1}"),
                  I(f"v_mul_f32 v{u0}, v{u0}, v{t0}"), I(f"v_mul_f32 v{u1}, v{u1}, v{t1}"),
                  I(f"v_cvt_pk_bf16_f32 v{T+p}, v{u0}, v{u1}")]
    o.append(I(f"buffer_store_dwordx4 {q(T)}, v{vL16}, {WS}, s{sHS+j} offen sc1", tag=("hst", g)))
    return o
def bf16r(d, s):
    return [I(f"v_cvt_pk_bf16_f32 v{d}, v{s}, v{s}"), I(f"v_and_b32 v{d}, 0xffff0000, v{d}")]
def stats_mean():
    return [I(f"v_add_f32 v{vS}, v{vS}, v{vS+1}"), I(f"v_add_f32 v{vQ}, v{vQ}, v{vQ+1}"),
         I(f"v_mov_b32 v{vS+1}, v{vS}"), I(f"v_mov_b32 v{vQ+1}, v{vQ}"),
         I(f"v_permlane32_swap_b32 v{vS}, v{vS+1}"), I(f"v_permlane32_swap_b32 v{vQ}, v{vQ+1}"),
         I(f"v_add_f32 v{vS}, v{vS}, v{vS+1}"), I(f"v_add_f32 v{vQ}, v{vQ}, v{vQ+1}"),
         I(f"v_mul_f32 v{vS}, 0x3b124925, v{vS}"), I(f"v_mul_f32 v{vQ}, 0x3b124925, v{vQ}"),
         I(f"v_cvt_pk_bf16_f32 v{vBX}, -v{vS}, -v{vS}")]
def stats_rest():
    o = [I(f"v_fma_f32 v{vQ}, -v{vS}, v{vS}, v{vQ}"), I(f"v_max_f32 v{vQ}, 0, v{vQ}")]
    o += bf16r(vQ, vQ) + [I(f"v_add_f32 v{vQ}, 0x3727c5ac, v{vQ}")] + bf16r(vQ, vQ) + [I(f"v_sqrt_f32 v{vQ}, v{vQ}"), I(f"v_and_b32 v5, 31, v{vLane}")] + bf16r(vQ, vQ)
    o += [I(f"v_rcp_f32 v2, v{vQ}"), I(f"v_mul_f32 v{vC2}, v{vQ}, v{vQ}"), I(f"v_and_b32 v3, 0xffff0000, v{vBX}"),
          I(f"v_mul_f32 v{vC1}, 0xbfb8aa3b, v2"), I("v_mul_f32 v3, v3, v2"),
          I(f"s_lshl_b32 s{sT0}, s{sW}, 8"), I(f"s_add_u32 s{sT0}, s{sT0}, {ST}"),
          I(f"v_lshl_add_u32 v5, v5, 3, s{sT0}"), I("ds_write_b64 v5, v[2:3]", tag="stw")]
    return o
def cs_final():
    return [I(f"v_add_f32 v{vC}, v{vC}, v{vC+1}")] + bf16r(vC+1, vC) + [I(f"v_sub_f32 v{vC+1}, v{vC}, v{vC+1}"),
            I(f"v_cvt_pk_bf16_f32 v4, v{vC}, v{vC+1}"), I(f"ds_write_b32 v{vCS}, v4", tag="csw")]
def cs_reads(g):
    o = []
    for j in range(4):
        if j == 0: o.append(I(f"ds_read_b32 v{vAX}, v{vCS}", tag=("csr", g)))
        else: o.append([I(f"v_xor_b32 v4, {256*j}, v{vCS}"), I(f"ds_read_b32 v{vAX+4*j}, v4", tag=("csr", g))])
    return o
def ext_mfma(g, j):
    a = ACC[g] + 16 * j
    return I(f"v_mfma_f32_32x32x16_bf16 {q(a,16)}, {q(vAX+4*j)}, {q(vBX)}, {q(a,16)}", needs=[("csr", g)])
def hc_load(e, i):
    ld = f"buffer_load_dwordx4 v{vL16}, {SK}, s{sHB} offen offset:{1024*i} lds"
    pre = [I(f"s_sub_u32 s{sHB}, s{sHB}, 2")] if (e == 1 and i == 0) else []
    return [I(f"s_add_u32 m0, s{sHE}, {4160*e}")] + pre + [I(ld, tag="hc")]
hc_head_ld = I(f"buffer_load_dword v13, v12, {SK}, s{sPAIR} offen", tag="hh")
hc_head = [I("v_lshlrev_b32 v12, 16, v13", needs=["hh"]), I("v_cmp_gt_i32 vcc, 0, v10"), I("v_cndmask_b32 v13, v13, v12, vcc"),
           I("v_cmp_gt_i32 vcc, -2, v10"), I("v_cndmask_b32 v13, v13, 0, vcc"), I("ds_write_b32 v11, v13", tag="hw")]
def u_loads():
    return [[I(f"s_lshl_b32 s{sT1}, s{sW}, 11"), I(f"s_add_u32 s{sT0}, s{sPAIR}, s{sT1}"), I(f"s_lshr_b32 s{sT2}, s{sW}, 1"), I(f"s_lshl_b32 s{sT2}, s{sT2}, 9")],
            [I(f"s_add_u32 s{sT1}, s{sT1}, s{sT2}"), I(f"s_add_u32 m0, s{sT1}, {UB+512}"), I(f"buffer_load_dwordx4 v{vL16}, {WS}, s{sT0} offen sc1 lds", tag="u")],
            I(f"buffer_load_dwordx4 v{vL16}, {WS}, s{sT0} offen offset:1024 sc1 lds", tag="u")]

def g_reads(c, ks):
    if c >= 14: return [[], [], [], []]
    o = [w_reads(c, ks, (j,)) for j in range(4)]
    if c < 7: xr = x_reads(c, ks); o[0] = [xr[0]] + o[0]; o[1] = [xr[1]] + o[1]
    return o
P.emit(g_reads(0, 0)); P.emit(g_reads(0, 1))
pend = w_loads(2) + x_loads(2)
E0X = opt("e0x", 2); E0N = opt("e0n", 64); F2 = opt("f2", 12)
e0 = []; e0x = []
for j in range(4):
    if j < E0X: e0x += silu_tile(0, j, True, vXT + 4 * j, 200 + 8 * (j % 2))
    else: e0 += silu_tile(0, j, False, vXT + 8 * ((j + 1) % 2))
e0slots = [[] for _ in range(112)]
if e0: spread(e0slots, e0, 0, E0N)
vHL = vXr
hl_setup = [I(f"s_mul_i32 s{sT0}, s{sRR}, {2*114688}"), I(f"s_lshl_b32 s{sT1}, s{sW}, 10"), I(f"s_add_u32 s{sT0}, s{sT0}, s{sT1}"),
            I(f"s_add_u32 s{sT0}, s{sT0}, {WS_H}"), I(f"v_add_u32 v{vHL}, s{sT0}, v{vL16}"), I(f"v_add_u32 v{vHL+1}, 114688, v{vHL}")]
spread(e0slots, hl_setup, 64, 70)
carry = [[] for _ in range(8)]
spread(carry, pend, 0, 8)
for c in range(14):
    g = c // 7; last = (c % 7 == 6)
    slots = g_reads(c, 2) + g_reads(c, 3)
    for k in range(8): slots[k] += carry[k] + (e0slots[16*(c-7)+k] if c >= 7 else cslots[16*c+k])
    if c >= 7: spread(slots, wd_reads(c-7), 0, 7)
    if c == 6: spread(slots, hc_head, 2, 8)
    interleave([g1_mfma(c, ks, j) for ks in (0, 1) for j in range(4)], slots)
    P.wait(("wf", c, 3, 0), *([("xt", c, 3)] if c < 7 else []))
    cacc = [vC, vC+1] if c < 7 else [vC, vC+1, vS, vS+1]
    for i in range(16):
        a = cacc[i % len(cacc)]
        if c % 7 == 0 and i < len(cacc): P(f"v_dot2_f32_bf16 v{a}, s{sONE}, v{vF0+i}, 0")
        else: P(f"v_dot2c_f32_bf16 v{a}, s{sONE}, v{vF0+i}")
        if c == 0 and i < 2: P(f"v_dot2_f32_bf16 v{vS+i}, s{sONE}, v{vXT+i}, 0"); P(f"v_dot2_f32_bf16 v{vQ+i}, v{vXT+i}, v{vXT+i}, 0")
        elif c < 7: P(f"v_dot2c_f32_bf16 v{vS+i%2}, s{sONE}, v{vXT+i}"); P(f"v_dot2c_f32_bf16 v{vQ+i%2}, v{vXT+i}, v{vXT+i}")
    P.emit(g1_mfma(c, 2, 0))
    if last: P.emit(([I(f"v_add_f32 v{vC}, v{vC}, v{vS}"), I(f"v_add_f32 v{vC+1}, v{vC+1}, v{vS+1}")] if c == 13 else []) + cs_final())
    needs = [("wf", c, 3, 3)]
    if c >= 7: needs.append(("wdf", c-7))
    if c < 13: needs.append(("w", c+1))
    if c < 6: needs.append(("x", c+1))
    if last: needs.append("csw")
    if c == 13: needs += ["u", "hc"]
    if c == F2: needs += [("hst", 0)]
    P.wait(*needs); P("s_barrier")
    if c in (6, 13) or FINE: P.emit(stamp())
    pend = []
    if c + 3 < 7: pend += x_loads(c+3)
    if c <= 4: pend += w_loads(c+3)
    if 4 <= c < 10: pend += w_loads(c+4)
    if 4 <= c <= 10: pend += wd_loads(c-4)
    if c == 10: pend += wd_loads(7)
    if c == 11: pend += wd_loads(8) + wd_loads(9)
    if c == 12: pend += wd_loads(10) + wd_loads(11)
    if c == 13: pend += wd_loads(12) + wd_loads(13)
    if c == 4: pend = [hc_head_ld] + pend
    if 3 <= c <= 10: pend += [hc_load((c-3) // 4, (c-3) % 4)]
    if c == T2_: pend += touch2
    if c == T3_: pend += touch3
    if c == 4:
        pend = [[I(f"s_sub_u32 s{sT0}, s{sWm0}, s{sPm0}"), I(f"v_add_u32 v{vWdR2}, s{sT0}, v{vWdR}"), I(f"v_add_u32 v{vWdR2+1}, s{sT0}, v{vWdR+1}")],
                [I(f"v_add_u32 v{vWdD2}, {128*896-2048}, v{vWdD}"), I(f"v_add_u32 v{vWdD2+1}, {128*896-2048}, v{vWdD+1}")]] + pend
    if c in (4, 5): pend += [I(f"buffer_store_dwordx4 v[192:195], v{vL16}, {WS}, s{sYS} offen offset:{1024*(c-4)} sc1", tag="sen")]
    if c == 12:
        pend += [[I(f"s_lshl_b32 s{sT0}, s{sCB}, 12"), I(f"s_sub_u32 s{sT0}, s{sT0}, {224*128}"), I(f"v_add_u32 v{vP1}, s{sT0}, v{vP1}")],
                 [I(f"v_cmp_gt_u32 vcc, 32, v{vLane}"), I(f"v_cndmask_b32 v{vP1}, v{vP1}, v{vP2}, vcc"), I(f"v_cndmask_b32 v{vFlag}, 2, 3, vcc")]]
    if c == 10: pend = [poll_issue(vP1, 1, "p1")] + pend
    if c == 11: pend = pend[:4] + [poll_check(vP1, 1, "p1")] + u_loads() + pend[4:]
    if c == opt("p0", 5): pend = [poll_issue(vP1, 0, "p0")] + pend
    if c == opt("p0", 5) + 2: pend = [poll_check(vP1, 0, "p0", 1)] + pend
    if c == F2: pend = [flag_store(2)] + pend
    if c == 13: pend = pend + [[I(f"s_add_u32 s{sHS+j}, s{sHS+j}, 4096") for j in range(4)]]
    nb = 12 if last else 8
    slots = g_reads(c+1, 0) + g_reads(c+1, 1) + [[] for _ in range(nb - 8)]
    win = [[] for _ in range(nb + (8 if c < 13 else 0))]
    spread(win, pend, 1, len(win))
    for k in range(nb): slots[k] += win[k]
    carry = win[nb:]
    for k in range(8): slots[k] += e0slots[16*(c-7)+8+k] if c >= 7 else cslots[16*c+8+k]
    if last: spread(slots, cs_reads(g), 0, 4)
    if c == 6: spread(slots, stats_mean() + stats_rest(), 0, 12)
    P.emit(slots[0])
    interleave([g1_mfma(c, ks, j) for ks in (2, 3) for j in range(4)][1:] + ([ext_mfma(g, j) for j in range(4)] if last else []), slots[1:])
    if c == 6 and e0x:
        sl = [[] for _ in e0x]; spread(sl, [x for x in carry if x], 4, len(e0x)); carry = [[] for _ in range(8)]
        interleave(e0x, sl); P.emit(fstamp("fine"))
pend = []

CACC = 56; CBUF = [128, 192]
def conv_reads(rr):
    b = CBUF[rr % 2]; o = []
    for p in range(8):
        o.append(I(f"ds_read_b128 {q(b+32+4*p)}, v{vCB} offset:{512*p+64*(3-rr)}", tag=("cb", rr, p)))
        for h in (0, 1):
            o.append(I(f"ds_read_b64_tr_b16 {q(b+4*p+2*h,2)}, v{vCA} offset:{64*rr+512*p+8*(1-h)}", tag=("ca", rr, p)))
    return o
e1 = []; e1st = []
for j in range(4):
    t = silu_tile(1, j, True, vXT + 4 * j, vAX + 8 * (j % 2)); e1 += t[:-1]; e1st.append(t[-1])
slots = [[] for _ in e1]
n = len(e1)
c0 = conv_reads(0)
P.emit(c0[:6])
PA = n * opt("p2a", 2) // 16
spread(slots, [poll_issue(vP2, 2, "p2a")] + e1st[:3], max(PA, n*3//4), n-2) if PA >= n*3//4 else None
if PA < n*3//4:
    slots[PA] += [poll_issue(vP2, 2, "p2a")]
    for j in range(3): slots[max(PA + 2 + 2*j, (j+1)*n//4)] += [e1st[j]]
spread(slots, c0[6:12], n-14, n-2)
slots[-1] += [e1st[3]]
interleave(e1, slots)
P.emit(stamp())

def hreg(i):
    if i < 28: return q(4*i, 4, 'a')
    i -= 28
    if i < 8: return q(224 + 4*i, 4, 'a')
    if i < 14: return q(232 + 4*(i-8))
    if i < 20: return q(104 + 4*(i-14))
    return q(192 + 4*(i-20))
HORD = [(st, nt) for st in range(14) for nt in (0, 1)] + [(st, 0) for st in range(14, 28)] + [(st, 1) for st in range(14, 28)]
def h_load(i):
    st, nt = HORD[i]; g, f2 = st // 14, st % 14
    ld = I(f"buffer_load_dwordx4 {hreg(i)}, v{vHL+nt}, {WS}, s{sD0} offen sc1", tag=("h", i))
    return [I(f"s_mov_b32 s{sD0}, {8192*f2+4096*g}"), ld] if (nt == 0 or g == 1) else [ld]
xs = [I(f"v_lshrrev_b32 v4, 4, v{vLane}"), I(f"v_lshl_add_u32 v5, v4, 2, v{vLane}"), I("v_and_b32 v5, 15, v5"), I("v_lshl_add_u32 v5, v4, 4, v5"),
      I(f"s_lshl_b32 s{sT0}, s{sW}, 13"), I(f"s_add_u32 s{sT0}, s{sT0}, {HC}"), I(f"v_lshl_add_u32 v8, v5, 4, s{sT0}")]
xs2 = [I(f"v_and_b32 v4, 3, v{vLane}"), I(f"v_lshrrev_b32 v5, 2, v{vLane}"), I("v_lshl_add_u32 v5, v4, 2, v5"), I("v_and_b32 v5, 15, v5"), I("v_lshl_add_u32 v5, v4, 4, v5"),
      I(f"s_lshl_b32 s{sT1}, s{sW}, 11"), I(f"s_add_u32 s{sT0}, s{sT1}, {HC}"), I(f"v_lshl_add_u32 v3, v5, 4, s{sT0}"),
      I(f"s_lshl_b32 s{sT0}, s{sW}, 10"), I(f"s_add_u32 s{sT0}, s{sT0}, {UB+512}"), I(f"v_lshl_add_u32 v7, v{vLane}, 3, s{sT0}"),
      I(f"v_lshlrev_b32 v9, 16, v{vDD}", needs=["dd"]), I(f"v_and_b32 v10, 0xffff0000, v{vDD}")]
F3 = opt("f3", 72); PB = opt("p2b", 112)
mf = []
for rr in range(4):
    b = CBUF[rr % 2]
    for qq in range(8):
        for p in range(qq + 1):
            a = CACC + 4*qq
            src = "0" if (rr == 0 and p == 0) else q(a)
            need = qq | 1 if rr == 0 else (qq | 3)
            mf.append(I(f"v_mfma_f32_16x16x32_bf16 {q(a)}, {q(b+4*p)}, {q(b+32+4*(qq-p))}, {src}", needs=[("ca", rr, need)]))
slots = [[] for _ in mf]
spread(slots, c0[12:], 0, 7); spread(slots, conv_reads(1), 8, 34); spread(slots, conv_reads(2), 36, 68); spread(slots, conv_reads(3), 72, 104)
slots[0] = poll_check(vP2, 2, "p2a") + slots[0]
for i in range(28): slots[1 + 4 * i] += h_load(i)
if F3 != 108: slots[F3] += [W(("hst", 1)), I("s_barrier")] + flag_store(3)
slots[108] += [W(("ca", 3, 7), ("hst", 1)), I("s_barrier")] + (flag_store(3) if F3 == 108 else [])
spread(slots, xs, 109, 120)
for k in range(5): slots[108 + 14 + 4*k] += [I(f"ds_write_b128 v8, {q(CACC+4*k)} offset:{1024*k}", tag="xw")]
spread(slots, xs2, 120, 142)
slots[PB] += [poll_issue(vP1, 3, "p2b")]
for k in (35, 71, 107): slots[k] += fstamp("late")
interleave(mf, slots)
P.emit(stamp())

GA = 128; UR = 88
def g2_mfma(i, mt):
    st, nt = HORD[i]; a = GA + 32*nt + 16*mt
    src = "0" if st == 0 else q(a, 16)
    return I(f"v_mfma_f32_32x32x16_bf16 {q(a,16)}, {q(wd_reg(st, mt),4,'a')}, {hreg(i)}, {src}", needs=[("h", i), ("wdf", st // 2)])
mf = [g2_mfma(i, mt) for i in range(56) for mt in (0, 1)]
slots = [[] for _ in mf]
for k in (5, 6, 7): slots[2*(k-5)] += [I(f"ds_write_b128 v8, {q(CACC+4*k)} offset:{1024*k}", tag="xw")]
slots[5] += [I(f"ds_read_b64 {q(UR+4*e+2*ch,2)}, v7 offset:{4608*ch+512*e}", tag="ur") for e in (0, 1) for ch in (0, 1)]
slots[7] += [W("xw", "ur"), I("s_barrier")]
spread(slots, [I(f"ds_read_b128 {q(CACC+16*e+4*w2)}, v3 offset:{8192*w2+1024*e}", tag=("xr", e)) for e in (0, 1) for w2 in range(4)], 7, 10)
ce = []
for e in (0, 1):
    b = CACC + 16 * e
    for ch in (0, 1):
        bb = b + 8 * ch
        ce += [I(f"v_add_f32 v{bb+jj}, v{bb+jj}, v{bb+4+jj}", needs=[("xr", e)]) for jj in range(4)]
        for d in (0, 1):
            u = UR + 4*e + 2*ch + d
            ce += [I(f"v_lshlrev_b32 v{bb+4+2*d}, 16, v{u}"), I(f"v_and_b32 v{bb+5+2*d}, 0xffff0000, v{u}")]
        ce += [I(f"v_fmac_f32 v{bb+jj}, v{9+ch}, v{bb+4+jj}") for jj in range(4)]
    ce += [I(f"v_cvt_pk_bf16_f32 v{b+4+jj}, v{b+jj}, v{b+8+jj}") for jj in range(4)]
    ce.append(I(f"buffer_store_dwordx4 {q(b+4)}, v{vL16}, {WS}, s{sYS} offen offset:{1024*e} sc1", tag="yst"))
spread(slots, ce, 11, 25)
H1_AT = opt("h1at", 9)
slots[H1_AT] += poll_check(vP1, 3, "p2b", f"v{vFlag}")
for i in range(28, 56):
    s = H1_AT + 1 + (i - 28) * opt("h1sp", 8) // 4
    assert s < 2 * i - 8 and s < 72
    slots[s] += h_load(i)
for u in range(7, 14): spread(slots, wd_reads(u), max(12, 8*(u-7)+8), max(12, 8*(u-7)+8) + 4)
XR = 56; YL = 64; XF = 72; SR = 88; YG = 96; XN = 16; vRW = 41; PR = 224
fin_setup = [I(f"v_lshrrev_b32 v5, 3, v{vLane}"), I(f"v_and_b32 v6, 7, v{vLane}"),
    I("v_mul_u32_u24 v8, 896, v5"), I("v_lshl_add_u32 v8, v6, 4, v8"),
    I(f"s_lshl3_add_u32 s{sT0}, s{sRR}, s{sW}"), I(f"s_mul_i32 s{sT0}, s{sT0}, {8*896}"),
    I(f"s_lshl_b32 s{sT1}, s{sCB}, 7"), I(f"s_add_u32 s{sD2}, s{sT0}, s{sT1}"), I(f"s_add_u32 s{sD3}, s{sD2}, {32*896}"),
    I(f"buffer_load_dwordx4 {q(XR)}, v8, {X}, s{sD2} offen", tag="xt"), I(f"buffer_load_dwordx4 {q(XR+4)}, v8, {X}, s{sD3} offen", tag="xt"),
    I(f"v_and_b32 v13, 15, v{vLane}"), I(f"s_lshl_b32 s{sT0}, s{sW}, 1"), I(f"v_xor_b32 v13, s{sT0}, v13"), I("v_lshlrev_b32 v13, 4, v13"),
    I(f"v_lshrrev_b32 v3, 4, v{vLane}"), I("v_lshl_add_u32 v3, v3, 13, v13"), I("v_xor_b32 v4, 16, v3"), I(f"v_add_u32 v4, 32768, v4"),
    I(f"s_lshl2_add_u32 s{sT0}, s{sCB}, s{sW}"), I(f"s_lshl_b32 s{sT0}, s{sT0}, 16"),
    I(f"s_lshl_b32 s{sT1}, s{sRR}, 8"), I(f"s_add_u32 s{sT0}, s{sT0}, s{sT1}"), I(f"s_add_u32 s{sD1}, s{sT0}, {WS_Y}"),
    I(f"s_lshl_b32 s{sT1}, s{sW}, 11"), I(f"s_add_u32 s{sT0}, s{sT1}, {YT}"), I(f"v_add_u32 v13, s{sT0}, v{vL16}"),
    I("v_lshlrev_b32 v9, 1, v6"), I("v_xor_b32 v9, v9, v5"), I("v_lshlrev_b32 v9, 4, v9"), I("v_lshl_add_u32 v9, v5, 8, v9"),
    I(f"s_add_u32 s{sT0}, s{sT1}, {PS}"), I(f"v_add_u32 v9, s{sT0}, v9"), I("v_xor_b32 v10, 16, v9"),
    I(f"v_lshrrev_b32 v7, 5, v{vLane}"), I(f"s_lshl_b32 s{sT0}, s{sW}, 1"), I(f"v_add_u32 v11, s{sT0}, v7"), I("v_xor_b32 v11, v11, v6"),
    I("v_lshlrev_b32 v11, 4, v11"), I("v_lshl_add_u32 v11, v6, 10, v11"), I("v_and_b32 v2, 3, v5"), I("v_lshl_add_u32 v11, v2, 2, v11"), I(f"v_add_u32 v11, {YT}, v11"),
    I(f"s_and_b32 s{sT0}, s{sRR}, 1"), I(f"s_lshl3_add_u32 s{sT0}, s{sT0}, s{sW}"), I(f"s_lshl_b32 s{sT0}, s{sT0}, 6"),
    I(f"s_add_u32 s{sT0}, s{sT0}, {ST}"), I(f"v_lshl_add_u32 v12, v5, 3, s{sT0}"),
    I(f"ds_read_b64 {q(SR,2)}, v12", tag="sr"), I(f"ds_read_b64 {q(SR+2,2)}, v12 offset:256", tag="sr"),
    I("v_xor_b32 v7, v7, v6"), I(f"v_lshl_add_u32 v7, v7, 4, s{sPm0}"), I(f"v_and_b32 v2, 31, v{vLane}"),
    I(f"v_lshl_add_u32 v{vRW}, v2, 8, v7"), I(f"v_xor_b32 v{vRW+1}, 32, v{vRW}"), I(f"v_xor_b32 v{vRW+2}, 64, v{vRW}"), I(f"v_xor_b32 v{vRW+3}, 96, v{vRW}"),
    I(f"s_lshl_b32 s{sT0}, s{sW}, 13"), I(f"s_sub_u32 s{sT0}, s{sT0}, s{sPm0}"), I(f"s_add_u32 s{sT0}, s{sT0}, {HC}")] + \
    [I(f"v_add_u32 v{vRW+4+k}, s{sT0}, v{vRW+k}") for k in range(4)]
spread(slots, fin_setup, 46, 70)
Y_AT = opt("yat", 72)
ylds = [f"buffer_load_dwordx4 {q(YL)}, v3, {WS}, s{sD1} offen sc1", f"buffer_load_dwordx4 {q(YL+4)}, v4, {WS}, s{sD1} offen sc1"]
ymax = [f"v_max3_u32 v2, v{YL}, v{YL+1}, v{YL+2}", f"v_max3_u32 v5, v{YL+3}, v{YL+4}, v{YL+5}", f"v_max3_u32 v2, v2, v{YL+6}, v{YL+7}", "v_max_u32 v2, v2, v5", "v_cmp_eq_u32 vcc, -1, v2"]
slots[Y_AT] += [I(t, tag="yl") for t in ylds]
slow.append("\n".join(["Lyslow:", f"s_mov_b32 s{sSPIN}, 0", "Lyspin:"] + ylds + [f"s_add_u32 s{sSPIN}, s{sSPIN}, 1", "s_waitcnt vmcnt(0)"] + ymax +
                      [f"s_cmp_gt_u32 s{sSPIN}, 0x40000", "s_cbranch_scc1 Lyback", "s_cbranch_vccnz Lyspin", "s_branch Lyback"]))
xpre = []
for nt in (0, 1):
    for d in range(4):
        xpre += [I(f"v_lshlrev_b32 v{XF+8*nt+2*d}, 16, v{XR+4*nt+d}", needs=["xt"]), I(f"v_and_b32 v{XF+8*nt+2*d+1}, 0xffff0000, v{XR+4*nt+d}")]
    xpre += [I(f"v_fma_f32 v{XN+8*nt+d}, v{XF+8*nt+d}, v{SR+2*nt}, v{SR+2*nt+1}", needs=["sr"]) for d in range(8)]
spread(slots, xpre, 74, 86)
def red_writes(nt): return [I(f"ds_write_b128 v{vRW+4*nt+i}, {q(GA+32*nt+16*mt+4*i)} offset:{128*mt}", tag=("rw", nt)) for mt in (0, 1) for i in range(4)]
def red_reads(nt): return [I(f"ds_read_b128 {q(PR+8*w2+4*e)}, v{9+e} offset:{(12288 if nt == 0 else 8192)*w2}", tag=("rr", nt)) for w2 in range(4) for e in (0, 1)]
for k, wr in enumerate(red_writes(0)): slots[86 + (k * 3) // 2] += [wr]
slots[98] += [I(ymax[0], needs=["yl"])] + [I(t) for t in ymax[1:]]
slots[99] += [I(f"s_mov_b32 s{sSPIN}, 0"), I("s_cbranch_vccnz Lyslow"), I("Lyback:")] + ([I(f"v_writelane_b32 v14, s{sSPIN}, 54")] if STAMP else []) + [I(f"ds_write_b128 v13, {q(YL)}", tag="yw")]
slots[101] += [I(f"ds_write_b128 v13, {q(YL+4)} offset:1024", tag="yw")]
slots[103] += [W("yw"), I("s_barrier")]
spread(slots, red_reads(0) + [I(f"ds_read_b32 v{YG+4*nt+jj}, v11 offset:{256*jj+128*nt}", tag="yg") for nt in (0, 1) for jj in range(4)], 103, 108)
spread(slots, [I(f"v_add_f32 v{PR+d}, v{PR+d}, v{PR+8+d}", needs=[("rr", 0)]) for d in range(8)] + [I(f"v_add_f32 v{PR+16+d}, v{PR+16+d}, v{PR+24+d}") for d in range(8)]
       + [I(f"v_add_u32 v9, {HC-PS}, v9"), I(f"v_add_u32 v10, {HC-PS}, v10")], 108, 112)
for k in (8, 24, 28, 54, 84, 97, 100): slots[k] += fstamp("late")
interleave(mf, slots)
P.emit(stamp())
T1 = 128
def s_mul(nt):
    o = []
    for d in range(4): o += [I(f"v_lshlrev_b32 v{XR+2*d}, 16, v{YG+4*nt+d}", needs=["yg"]), I(f"v_and_b32 v{XR+2*d+1}, 0xffff0000, v{YG+4*nt+d}")]
    return o + [I(f"v_pk_mul_f32 {q(XN+8*nt+d,2)}, {q(XN+8*nt+d,2)}, {q(XR+d,2)}") for d in range(0, 8, 2)]
def out_math(nt):
    o = [I(f"v_pk_add_f32 {q(PR+d,2)}, {q(PR+d,2)}, {q(PR+16+d,2)}") for d in range(0, 8, 2)]
    o += [I(f"v_mul_f32 v{T1+d}, 0xbfb8aa3b, v{PR+d}") for d in range(8)]
    o += [I(f"v_exp_f32 v{T1+d}, v{T1+d}") for d in range(8)]
    o += [I(f"v_pk_mul_f32 {q(XN+8*nt+d,2)}, {q(XN+8*nt+d,2)}, {q(PR+d,2)}") for d in range(0, 8, 2)]
    o += [I(f"v_pk_add_f32 {q(T1+d,2)}, {q(T1+d,2)}, 1.0 op_sel_hi:[1,0]") for d in range(0, 8, 2)]
    o += [I(f"v_rcp_f32 v{T1+d}, v{T1+d}") for d in range(8)]
    o += [I(f"v_pk_fma_f32 {q(XF+8*nt+d,2)}, {q(XN+8*nt+d,2)}, {q(T1+d,2)}, {q(XF+8*nt+d,2)}") for d in range(0, 8, 2)]
    o += [I(f"v_cvt_pk_bf16_f32 v{T1+8+4*nt+d}, v{XF+8*nt+2*d}, v{XF+8*nt+2*d+1}") for d in range(4)]
    o.append(I(f"buffer_store_dwordx4 {q(T1+8+4*nt)}, v8, {OUT}, s{[sD2, sD3][nt]} offen" + (" sc1" if opt("osc", 0) else ""), tag="ost"))
    return o
m0_ = s_mul(0) + out_math(0) + s_mul(1)
slots = [[] for _ in m0_]
spread(slots, red_writes(1), 8, len(m0_) - 10)
interleave(m0_, slots)
P.wait(("rw", 1)); P("s_barrier")
P.emit(red_reads(1))
P.wait(("rr", 1))
for d in range(0, 8, 2): P(f"v_pk_add_f32 {q(PR+d,2)}, {q(PR+d,2)}, {q(PR+8+d,2)}"); P(f"v_pk_add_f32 {q(PR+16+d,2)}, {q(PR+16+d,2)}, {q(PR+24+d,2)}")
P.emit(out_math(1))
if HOLD or PROBE: P.emit(stamp())
if PROBE:
    if len(PROBE) > 1: P(f"s_cmp_lg_u32 s2, {PROBE[1]}"); P("s_cbranch_scc1 Lend")
    P("s_lshl_b32 s28, s28, 2"); P("s_add_u32 s28, s28, 3000")
    P("Lhold:"); P("s_memrealtime s[16:17]", tag="stp"); P(f"s_sub_u32 s16, s16, s{sSTP}", needs=["stp"]); P("s_cmp_lt_u32 s16, s28"); P("s_cbranch_scc1 Lhold")
if STAMP:
    P.emit(stamp()); P.emit(stamp()); P.wait_all()
    P("s_memrealtime s[16:17]", tag="stp"); P("v_writelane_b32 v14, s54, 62"); P("v_writelane_b32 v14, s16, 63", needs=["stp"])
    P(f"s_lshl2_add_u32 s{sSTP}, s2, s{sW}"); P(f"s_lshl_b32 s{sSTP}, s{sSTP}, 8"); P(f"s_add_u32 s{sSTP}, s{sSTP}, {WS_STAMP}")
    P(f"v_lshlrev_b32 v15, 2, v{vLane}"); P(f"buffer_store_dword v14, v15, {WS}, s{sSTP} offen", tag="stpst")
    print("stamps:", nstamp[0] - 1)
P("Lend:"); P("s_endpgm")

HP = Prog(); H = HP
H("Lhelper:")
H(f"s_sub_u32 s{sRR}, s2, {NWG}")
H("v_lshlrev_b32 v9, 2, v7"); H("v_xor_b32 v9, v9, v6"); H("v_lshl_add_u32 v9, v9, 4, v8")
H(f"s_lshl2_add_u32 s{sT0}, s{sRR}, s{sW}"); H(f"s_mul_i32 s{sT1}, s{sT0}, {16*896}")
H(f"v_add_u32 v10, s{sT1}, v9"); H(f"v_add_u32 v11, {8*896-1024}, v10"); H(f"v_subrev_u32 v12, {8*896}, v10")
H(f"s_mul_i32 s{sPm0}, s{sW}, 5120"); H(f"v_lshlrev_b32 v9, 3, v{vLane}")
H.wait_all(vm=False)
if STAMP: H("s_mov_b32 s98, s54"); H("s_mov_b32 s99, s52")
H.emit(srd(K, 18, 1835008)); H.emit(srd(V, 20, 1835008)); H.emit(srd(SH, 22, 3584)); H.emit(srd(DBG, 38, 256)); H.emit(srd(WS, 40, WS_SIZE))
TAP = 64; HTB = 143360
def kv_loads(cb):
    s = 20480 * cb
    H(f"s_add_u32 m0, s{sPm0}, {s}"); H(f"s_movk_i32 s{sD0}, {128*cb}")
    H(f"buffer_load_dwordx4 v12, {K}, s{sD0} offen lds", tag=("kv", cb))
    H(f"s_add_u32 m0, s{sPm0}, {s+1024}"); H(f"buffer_load_dwordx2 {q(TAP+2*cb,2)}, v9, {SH}, 0 offen offset:{512*cb}", tag=("kv", cb))
    H(f"buffer_load_dwordx4 v10, {K}, s{sD0} offen lds", tag=("kv", cb)); H(f"buffer_load_dwordx4 v11, {K}, s{sD0} offen offset:1024 lds", tag=("kv", cb))
    H(f"s_add_u32 m0, s{sPm0}, {s+3072}")
    H(f"buffer_load_dwordx4 v10, {V}, s{sD0} offen lds", tag=("kv", cb)); H(f"buffer_load_dwordx4 v11, {V}, s{sD0} offen offset:1024 lds", tag=("kv", cb))
H(f"s_lshl_b32 s{sT1}, s{sRR}, 24"); H(f"s_add_u32 s{sT2}, s{sT1}, {WS_FLAG}"); H(f"v_lshl_add_u32 v13, v0, 7, s{sT2}"); H("v_mov_b32 v15, 0")
H(f"buffer_store_dword v15, v13, {WS}, 0 offen sc1", tag="clr")
kv_loads(0); kv_loads(1)
H(f"v_lshl_add_u32 v{vFlag}, v0, 8, s{sT1}")
H(f"s_lshl_b32 s{sT1}, s2, 7"); H(f"s_add_u32 s{sT1}, s{sT1}, {WS_FLAG}"); H(f"v_lshl_add_u32 v{vP2}, v0, 24, s{sT1}")
H(f"v_and_b32 v2, 3, v{vLane}"); H(f"v_bfe_u32 v3, v{vLane}, 2, 2"); H(f"v_lshl_add_u32 v2, v2, 3, s{sPm0}"); H("v_lshl_add_u32 v2, v3, 7, v2")
H("v_and_b32 v3, 2, v3"); H(f"v_lshrrev_b32 v4, 4, v{vLane}"); H("v_xor_b32 v3, v3, v4"); H("v_lshl_add_u32 v16, v3, 5, v2")
H(f"s_lshl_b32 s{sT1}, s{sW}, 1"); H(f"v_xor_b32 v2, s{sT1}, v6"); H("v_lshlrev_b32 v2, 4, v2"); H(f"v_lshl_add_u32 v2, v{vLane}, 7, v2")
H(f"v_add_u32 v17, {HTB}, v2"); H("v_xor_b32 v18, 16, v17")
H("v_xor_b32 v2, v5, v6"); H("v_lshlrev_b32 v2, 4, v2"); H("v_lshl_add_u32 v2, v5, 7, v2")
H(f"s_lshl_b32 s{sT1}, s{sW}, 11"); H(f"s_add_u32 s{sT1}, s{sT1}, {HTB}"); H(f"v_add_u32 v19, s{sT1}, v2")
H("v_lshlrev_b32 v2, 4, v6"); H("v_lshl_add_u32 v20, v5, 12, v2"); H("v_add_u32 v21, 32768, v20")
H(f"s_lshl_b32 s{sD3}, s{sW}, 16"); H(f"s_lshl_b32 s{sT1}, s{sRR}, 7"); H(f"s_add_u32 s{sD3}, s{sD3}, s{sT1}")
TMP = 160; Wa, Wb, Wc, Wd_, We = 24, 25, 26, 27, 28
def kv_reads(cb):
    KD = 96 + 20 * (cb % 2); VD = KD + 10
    for b in range(5): H(f"ds_read_b64_tr_b16 {q(KD+2*b,2)}, v16 offset:{512*(b+1)}", needs=[("kv", cb)], tag=("kd", cb))
    for b in range(4): H(f"ds_read_b64_tr_b16 {q(VD+2*b,2)}, v16 offset:{3072+512*b}", tag=("kd", cb))
    H("v_add_u32 v16, 20480, v16")
def kv_out(cb):
    ob = 192 + 8 * cb
    H(f"buffer_store_dwordx4 {q(ob)}, v20, {WS}, s{sD3} offen sc1", needs=[("tr", cb)], tag="st"); H(f"buffer_store_dwordx4 {q(ob+4)}, v21, {WS}, s{sD3} offen sc1", tag="st")
    H(f"s_add_u32 s{sD3}, s{sD3}, 262144")
def sentinel(n):
    for k in range(n):
        H(f"buffer_store_dwordx4 v[80:83], v{vL16}, {WS}, s{sD2} offen offset:{1024*(k%2)} sc1", tag="st")
        if k % 2: H(f"s_add_u32 s{sD2}, s{sD2}, 2048")
kv_reads(0)
for cb in range(7):
    KD = 96 + 20 * (cb % 2); VD = KD + 10
    t0, t1 = TAP + 2*cb, TAP + 2*cb + 1; tb = 8192 * (cb % 2); ob = 192 + 8 * cb
    H(f"v_alignbit_b32 v{Wa}, v{t1}, v{t1}, 16"); H(f"v_alignbit_b32 v{Wb}, v{t0}, v{t0}, 16")
    H(f"v_and_b32 v{Wc}, 0xffff0000, v{t1}"); H(f"v_and_b32 v{We}, 0xffff, v{t0}"); H(f"v_alignbit_b32 v{Wd_}, v{Wb}, v{Wa}, 16")
    H.wait(("kd", cb))
    for d in range(8): H(f"v_dot2_f32_bf16 v{TMP+2*d}, v{KD+d}, v{Wc}, 0"); H(f"v_dot2_f32_bf16 v{TMP+2*d+1}, v{KD+d+1}, v{Wa}, 0")
    if cb < 3: kv_loads(2 + 2*cb)
    if cb == 5: H.emit(poll_issue(0, 0, "p0"))
    if cb >= 2: kv_out(cb - 2)
    for d in range(8): H(f"v_dot2c_f32_bf16 v{TMP+2*d}, v{KD+d+1}, v{Wd_}"); H(f"v_dot2c_f32_bf16 v{TMP+2*d+1}, v{KD+d+2}, v{Wb}")
    for d in range(8): H(f"v_dot2c_f32_bf16 v{TMP+2*d}, v{KD+d+2}, v{We}")
    for d in range(8): H(f"v_lshlrev_b32 v{TMP+16+2*d}, 16, v{VD+d}"); H(f"v_and_b32 v{TMP+17+2*d}, 0xffff0000, v{VD+d}")
    if cb < 2: kv_loads(3 + 2*cb)
    if cb == 6: kv_out(5)
    if cb < 6: kv_reads(cb + 1)
    for d in range(8): H(f"v_pk_mul_f32 {q(TMP+2*d,2)}, {q(TMP+2*d,2)}, {q(TMP+16+2*d,2)}")
    for d in range(8): H(f"v_cvt_pk_bf16_f32 v{152+d}, v{TMP+2*d}, v{TMP+2*d+1}")
    H(f"ds_write_b128 v17, {q(152)} offset:{tb}", tag="tw"); H(f"ds_write_b128 v18, {q(156)} offset:{tb}", tag="tw")
    H.wait("tw", "clr"); H("s_barrier")
    if cb == 0: H("v_mov_b32 v2, 1"); H(f"buffer_store_dword v2, v{vFlag}, {DBG}, 0 offen sc1", tag="st")
    if STAMP: H(f"s_memtime s[{60+2*cb}:{61+2*cb}]", tag="stp")
    H(f"ds_read_b128 {q(ob)}, v19 offset:{tb}", tag=("tr", cb)); H(f"ds_read_b128 {q(ob+4)}, v19 offset:{tb+1024}", tag=("tr", cb))
kv_out(6)
H.emit(poll_check(0, 0, "p0", 1)[:4])
H.wait_all(); H("s_barrier")
H("v_mov_b32 v2, 1"); H(f"buffer_store_dword v2, v{vP2}, {WS}, 0 offen sc1", tag="st")
if STAMP:
    H(f"s_lshl_b32 s{sSTP}, s2, 2"); H(f"s_add_u32 s{sSTP}, s{sSTP}, s{sW}"); H(f"s_lshl_b32 s{sSTP}, s{sSTP}, 8"); H(f"s_add_u32 s{sSTP}, s{sSTP}, {WS_STAMP}")
    H("s_memrealtime s[16:17]", tag="stp"); H("s_memtime s[74:75]", tag="stp"); H("v_writelane_b32 v14, s16, 63", needs=["stp"]); H("v_writelane_b32 v14, s98, 62"); H("v_writelane_b32 v14, s99, 0")
    for k in range(8): H(f"v_writelane_b32 v14, s{60+2*k}, {k+1}")
    H(f"v_lshlrev_b32 v15, 2, v{vLane}"); H(f"buffer_store_dword v14, v15, {WS}, s{sSTP} offen", tag="st")
H("s_endpgm")

ins, added = pad_hazards(P.out)
for i in ins: i.t = i.t.replace("NLINES", "200")
hins, _ = pad_hazards(HP.out)
tmp = ins + [I(l) for s in slow for l in s.splitlines()] + hins
total, mis = align8(tmp, opt('nopc', 6))
nl = min(255, (total - 64) // 128)
assert nl > 64
body = "\n".join(("" if i.t.endswith(":") else "    ") + i.t.replace("v_min_u32 v2, 200, v2", f"v_min_u32 v2, {nl}, v2") for i in tmp)
hdr = open(f"cdna_kernels/{NAME}.s.ref").read().split("; Override launch")[0]
txt = hdr + f"""; @launch grid=({NGRID},1,1) block=(256,1,1) lds={LDS_SIZE}
; {('stamps ' + str(nstamp[0]-1)) if STAMP else ''}
; generated by gen/gen.py (hand-written schedule): one persistent launch, 224 GEMM/conv workgroups + 32 helper workgroups
;   kv = shiftconv(k)*v -> GEMM1 (gate/up, LayerNorm folded in) -> Toeplitz-MFMA long conv -> GEMM2 + output gate
.amdgcn_target "amdgcn-amd-amdhsa--gfx950"
.text
.globl {NAME}_kernel
.p2align 12
.p2align 8
.type {NAME}_kernel,@function
{NAME}_kernel:
{body}
.section .rodata,"a"
.p2align 6
.amdhsa_kernel {NAME}_kernel
  .amdhsa_next_free_vgpr 512
  .amdhsa_next_free_sgpr 102
  .amdhsa_accum_offset 256
  .amdhsa_group_segment_fixed_size 0
  .amdhsa_kernarg_size 104
  .amdhsa_user_sgpr_count 2
  .amdhsa_user_sgpr_kernarg_segment_ptr 1
  .amdhsa_system_sgpr_workgroup_id_x 1
  .amdhsa_float_denorm_mode_32 3
.end_amdhsa_kernel
"""
open(OUTP, "w").write(txt)
print(f"{OUTP}: {len(tmp)} lines, {total} bytes, nop states added {added}, misaligned 8B {mis}")
```
